```python
import torch

def _softmax(x, axis=-1):
    return torch.softmax(x, dim=axis)

def _gelu(x):
    return torch.nn.functional.gelu(x, approximate='tanh')

def _silu(x):
    return torch.nn.functional.silu(x)

def _sigmoid(x):
    return torch.sigmoid(x)

def _layernorm(x, axis=-1, eps=1e-05):
    m = x.mean(dim=axis, keepdim=True)
    v = x.var(dim=axis, keepdim=True, unbiased=False)
    return (x - m) / torch.sqrt(v + eps)

def _scatter_add(tgt, idx, src, axis=0):
    return tgt.clone().index_add_(axis, idx, src)

def _segment_sum(src, seg, n):
    out = torch.zeros((n,) + src.shape[1:], dtype=src.dtype)
    return out.index_add_(0, seg, src)

def _pad(x, pw):
    flat = tuple((v for pair in reversed(pw) for v in pair))
    return torch.nn.functional.pad(x, flat)
kernel_name = 'parallel_sum__memory_aug_recurrent_mem_tr__geglu_ffn__prompt'

def setup_inputs():

    _w = lambda a: (lambda t: t.to(torch.bfloat16) if t.is_floating_point() else t)(torch.as_tensor(a))

    def _A_setup():
        B, S, Dm = (1, 2048, 512)
        H, Dh = (32, 128)
        M, seg = (8, 32)
        seg = min(seg, S)
        S = S // seg * seg
        return {'x': _w((lambda *s: torch.randn(*s, dtype=torch.bfloat16) * 0.05)(B, S, Dm)), 'mem0': _w((lambda *s: torch.randn(*s, dtype=torch.bfloat16) * 1.6)(B, M, Dm)), 'Wq': _w((lambda *s: torch.randn(*s, dtype=torch.bfloat16) * 0.8)(Dm, H, Dh) * Dm ** (-0.5)), 'Wk': _w((lambda *s: torch.randn(*s, dtype=torch.bfloat16) * 0.8)(Dm, H, Dh) * Dm ** (-0.5)), 'Wv': _w((lambda *s: torch.randn(*s, dtype=torch.bfloat16) * 1.6)(Dm, H, Dh) * Dm ** (-0.5)), 'Wo': _w((lambda *s: torch.randn(*s, dtype=torch.bfloat16) * 1.6)(H, Dh, Dm) * (H * Dh) ** (-0.5)), 'seg_len': seg}
    _A_in = _A_setup()

    def _B_setup():
        B, S, D, F = (1, 2048, 512, 1792)
        return {'x': _w((lambda *s: torch.randn(*s, dtype=torch.bfloat16) * 0.05)(B, S, D)), 'w_gate': _w((lambda *s: torch.randn(*s, dtype=torch.bfloat16) * 0.05)(D, F)), 'w_up': _w((lambda *s: torch.randn(*s, dtype=torch.bfloat16) * 0.05)(D, F)), 'w_down': _w((lambda *s: torch.randn(*s, dtype=torch.bfloat16) * 0.05)(F, D))}
    _B_in = _B_setup()
    return {'A_x': _A_in['x'], 'A_mem0': _A_in['mem0'], 'A_Wq': _A_in['Wq'], 'A_Wk': _A_in['Wk'], 'A_Wv': _A_in['Wv'], 'A_Wo': _A_in['Wo'], 'A_seg_len': _A_in['seg_len'], 'B_x': _B_in['x'], 'B_w_gate': _B_in['w_gate'], 'B_w_up': _B_in['w_up'], 'B_w_down': _B_in['w_down']}

def reference(A_x, A_mem0, A_Wq, A_Wk, A_Wv, A_Wo, A_seg_len, B_x, B_w_gate, B_w_up, B_w_down):

    def _A_ref(x, mem0, Wq, Wk, Wv, Wo, seg_len):
        B, S, Dm = x.shape
        H, Dh = (Wq.shape[1], Wq.shape[2])
        M = mem0.shape[1]
        scale = Dh ** (-0.5)
        n_seg = S // seg_len
        L = M + seg_len
        idx = torch.arange(L)
        mask = (idx[:, None] < M) | (idx[:, None] >= idx[None, :])
        mem = mem0
        outs = []
        for s in range(n_seg):
            xs = x[:, s * seg_len:(s + 1) * seg_len, :].clone()
            h = torch.concatenate([mem, xs], axis=1)
            q = torch.einsum('btd,dhe->bhte', h, Wq)
            k = torch.einsum('btd,dhe->bhte', h, Wk)
            v = torch.einsum('btd,dhe->bhte', h, Wv)
            scores = torch.einsum('bhqe,bhke->bhqk', q, k) * scale
            scores = torch.where(mask[None, None], scores, -1000000000.0)
            p = _softmax(scores, axis=-1)
            o = torch.einsum('bhqk,bhke->bhqe', p, v)
            o = torch.einsum('bhte,hed->btd', o, Wo)
            mem = o[:, :M, :].clone()
            outs.append(o[:, M:, :])
        return torch.concatenate(outs, axis=1)

    def _B_ref(x, w_gate, w_up, w_down):
        return _gelu(x @ w_gate) * (x @ w_up) @ w_down
    x = A_x
    xn = _layernorm(x, axis=-1)
    return x + _A_ref(xn, A_mem0, A_Wq, A_Wk, A_Wv, A_Wo, A_seg_len) + _B_ref(xn, B_w_gate, B_w_up, B_w_down)
```

```python
NAME = "parallel_sum__memory_aug_recurrent_mem_tr__geglu_ffn__prompt"
MB = 1 << 20
XN   = 0
KV   = 2*MB
QX   = 34*MB
HH   = 50*MB
OO   = 57*MB
KVM  = 85*MB
KVM_SZ = 4608
AG   = 81*MB
RS   = 82*MB
RS_STRIDE = 8192 + 256
RS_SLOT = 524288
FL   = 83*MB
FL_KV  = FL
FL_KVM = FL + 34816
FL_O   = FL + 69632
TS   = 84*MB
WS_BYTES = 268435456
D_CNT = 0
D_OVF = 16
D_ARR = 32
D_P2  = 40
D_REC = 48
D_ERR = 56

class Asm:
    def __init__(self):
        self.l = []
        self.n = 0
    def __call__(self, s):
        for x in s.split("\n"):
            x = x.strip()
            if x: self.l.append(("" if x.endswith(":") else "    ") + x)
    def lab(self, p="L"):
        self.n += 1
        return f"{p}_{self.n}"
    def text(self): return "\n".join(self.l) + "\n"

def v(a, n=1): return f"v{a}" if n == 1 else f"v[{a}:{a+n-1}]"
def a_(a, n=1): return f"a{a}" if n == 1 else f"a[{a}:{a+n-1}]"
def s_(a, n=1): return f"s{a}" if n == 1 else f"s[{a}:{a+n-1}]"

S_X, S_MEM0, S_WQ, S_WK, S_WV, S_WO = 8, 10, 12, 14, 16, 18
S_GATE, S_UP, S_DOWN, S_OUT, S_DBG, S_WS = 24, 26, 28, 30, 32, 34
R_WS, R_A, R_B, R_OUT, R_X = 36, 40, 44, 48, 52
S_W = 3
S_ROLE = 4
S_PL, S_PH = 56, 57
def srd(r): return f"s[{r}:{r+3}]"

def mk_srd(o, r, p, nbytes):
    o(f"s_mov_b32 s{r}, s{p}\ns_mov_b32 s{r+1}, s{p+1}\ns_mov_b32 s{r+2}, {nbytes}\ns_mov_b32 s{r+3}, 0x00020000")

def allreduce(o, op, regs, tmps):
    for sh in (8, 4, 2, 1):
        o("s_nop 1")
        for r in regs: o(f"{op}_dpp v{r}, v{r}, v{r} row_ror:{sh} row_mask:0xf bank_mask:0xf")
    for sw in ("v_permlane16_swap_b32", "v_permlane32_swap_b32"):
        for r, t in zip(regs, tmps): o(f"v_mov_b32 v{t}, v{r}")
        o("s_nop 1")
        for r, t in zip(regs, tmps): o(f"{sw} v{r}, v{t}")
        o("s_nop 1")
        for r, t in zip(regs, tmps): o(f"{op} v{r}, v{r}, v{t}")

SPIN_MAX = 200000
def spin_fail(o, code):
    o(f"v_mov_b32 v1, {code}\nv_mov_b32 v2, {D_ERR*4}\nglobal_atomic_or v2, v1, s[{S_DBG}:{S_DBG+1}] sc1\ns_waitcnt vmcnt(0)\ns_endpgm")

def wait_dbg(o, idx, target, vt, va, code):
    L, D = o.lab("WD"), o.lab("WDD")
    o(f"s_cmp_lg_u32 s{S_W}, 0\ns_cbranch_scc1 {D}")
    o(f"v_mov_b32 v{va}, {idx*4}\ns_mov_b32 s60, 0")
    o(f"{L}:")
    o(f"global_load_dword v{vt}, v{va}, s[{S_DBG}:{S_DBG+1}] sc1\ns_waitcnt vmcnt(0)")
    o(f"v_readfirstlane_b32 s61, v{vt}\ns_cmp_ge_u32 s61, {target}\ns_cbranch_scc1 {D}")
    o(f"s_add_u32 s60, s60, 1\ns_cmp_lt_u32 s60, {SPIN_MAX}\ns_cbranch_scc1 {L}")
    spin_fail(o, code)
    o(f"{D}:\ns_barrier")

def arrive_dbg(o, idx, vt, va):
    D = o.lab("AR")
    o(f"s_waitcnt vmcnt(0)\ns_barrier\ns_cmp_lg_u32 s{S_W}, 0\ns_cbranch_scc1 {D}")
    o(f"v_mov_b32 v{va}, {idx*4}\nv_mov_b32 v{vt}, 1\ns_mov_b64 exec, 1")
    o(f"global_atomic_add v{va}, v{vt}, s[{S_DBG}:{S_DBG+1}] sc1\ns_mov_b64 exec, -1")
    o(f"{D}:")

def stamp(o, slot, on):
    if not on: return
    o(f"s_memrealtime s[62:63]\ns_waitcnt lgkmcnt(0)\nv_mov_b32 v255, s62")
    o(f"s_lshl_b32 s62, s{S_ROLE}, 2\ns_add_u32 s62, s62, s{S_W}\ns_lshl_b32 s62, s62, 7\ns_add_u32 s62, s62, {TS+slot*4}")
    o(f"v_mov_b32 v254, 0\nbuffer_store_dword v255, v254, {srd(R_WS)}, s62 offen")
```

```python
from common import *
def prologue(o, dbg):
    o(f"""
    s_cmp_ge_u32 s2, 256
    s_cbranch_scc1 K_EXIT
    s_load_dwordx16 s[8:23], s[0:1], 0
    s_load_dwordx8 s[24:31], s[0:1], 64
    s_load_dwordx4 s[32:35], s[0:1], 96
    s_getreg_b32 s5, hwreg(HW_REG_XCC_ID, 0, 4)
    v_lshrrev_b32 v1, 6, v0
    v_and_b32 v0, 63, v0
    s_mov_b32 s{S_PL}, 0x05040100
    v_readfirstlane_b32 s{S_W}, v1
    s_mov_b32 s{S_PH}, 0x07060302
    s_mov_b32 s{S_ROLE}, 0
    s_waitcnt lgkmcnt(0)
    """)
    mk_srd(o, R_WS, S_WS, WS_BYTES)
    mk_srd(o, R_X, S_X, 2048*512*2)
    mk_srd(o, R_OUT, S_OUT, 2048*512*2)
    mk_srd(o, R_A, S_WQ, 512*4096*2)
    mk_srd(o, R_B, S_WK, 512*4096*2)
    o(f"""
    v_mov_b32 v40, 0
    s_cmp_lg_u32 s{S_W}, 0
    s_cbranch_scc1 P0_NOTICKET
    s_lshl_b32 s6, s5, 2
    v_mov_b32 v41, s6
    v_mov_b32 v42, 1
    s_mov_b64 exec, 1
    global_atomic_add v40, v41, v42, s[{S_DBG}:{S_DBG+1}] sc0 sc1
    s_mov_b64 exec, -1
    P0_NOTICKET:
    """)
    o(f"""
    s_lshl_b32 s6, s2, 2
    s_add_u32 s6, s6, s{S_W}
    s_lshl_b32 s6, s6, 11
    v_lshlrev_b32 v1, 4, v0
    buffer_load_dwordx4 v[4:7], v1, {srd(R_X)}, s6 offen
    buffer_load_dwordx4 v[8:11], v1, {srd(R_X)}, s6 offen offset:1024
    """)
    o(f"""
    s_lshl_b32 s7, s2, 2
    s_add_u32 s7, s7, s{S_W}
    s_lshl_b32 s7, s7, 7
    s_add_u32 s7, s7, {FL}
    v_lshlrev_b32 v2, 2, v0
    v_mov_b32 v3, 0
    s_mov_b32 exec_hi, 0
    buffer_store_dword v3, v2, {srd(R_WS)}, s7 offen sc1
    s_mov_b64 exec, -1
    s_waitcnt vmcnt(1)
    """)
    for r in range(2):
        for j in range(4):
            o(f"v_lshlrev_b32 v{12+8*r+2*j}, 16, v{4+4*r+j}\nv_and_b32 v{13+8*r+2*j}, 0xffff0000, v{4+4*r+j}")
    for r in range(2):
        b = 12+8*r
        o(f"v_add_f32 v{28+r}, v{b}, v{b+1}")
        for j in range(2, 8): o(f"v_add_f32 v{28+r}, v{28+r}, v{b+j}")
    allreduce(o, "v_add_f32", [28, 29], [30, 31])
    o("v_mul_f32 v28, 0x3b000000, v28\nv_mul_f32 v29, 0x3b000000, v29")
    for r in range(2):
        b = 12+8*r
        o(f"v_sub_f32 v34, v{b}, v{28+r}\nv_mul_f32 v{32+r}, v34, v34")
        for j in range(1, 8): o(f"v_sub_f32 v34, v{b+j}, v{28+r}\nv_fma_f32 v{32+r}, v34, v34, v{32+r}")
    allreduce(o, "v_add_f32", [32, 33], [30, 31])
    o("v_mul_f32 v32, 0x3b000000, v32\nv_mul_f32 v33, 0x3b000000, v33")
    def rnd2(x, y):
        o(f"v_cvt_pk_bf16_f32 v34, v{x}, v{y}\nv_lshlrev_b32 v{x}, 16, v34\nv_and_b32 v{y}, 0xffff0000, v34")
    rnd2(28, 29); rnd2(32, 33)
    o("v_add_f32 v32, 0x3727c5ac, v32\nv_add_f32 v33, 0x3727c5ac, v33")
    rnd2(32, 33)
    o("v_sqrt_f32 v32, v32\nv_sqrt_f32 v33, v33\ns_nop 0")
    rnd2(32, 33)
    o("v_rcp_f32 v32, v32\nv_rcp_f32 v33, v33\ns_nop 0")
    for r in range(2):
        b = 12+8*r
        for j in range(4):
            x, y = b+2*j, b+2*j+1
            o(f"v_sub_f32 v{x}, v{x}, v{28+r}\nv_sub_f32 v{y}, v{y}, v{28+r}")
            rnd2(x, y)
            o(f"v_mul_f32 v{x}, v{x}, v{32+r}\nv_mul_f32 v{y}, v{y}, v{32+r}\nv_cvt_pk_bf16_f32 v{4+4*r+j}, v{x}, v{y}")
    o(f"""
    v_mul_u32_u24 v2, 144, v0
    s_lshl_b32 s6, s{S_W}, 5
    v_add_u32 v2, s6, v2
    ds_write_b128 v2, v[4:7]
    ds_write_b128 v2, v[8:11] offset:16
    s_cmp_lg_u32 s{S_W}, 0
    s_cbranch_scc1 P0_NOW
    v_mov_b32 v3, 9216
    s_mov_b64 exec, 1
    ds_write_b32 v3, v40
    s_mov_b64 exec, -1
    P0_NOW:
    s_waitcnt lgkmcnt(0)
    s_barrier
    """)
    o(f"""
    v_lshrrev_b32 v2, 3, v0
    v_and_b32 v3, 7, v0
    s_lshl_b32 s6, s{S_W}, 4
    v_add_u32 v2, s6, v2
    v_mul_u32_u24 v12, 144, v2
    v_lshl_add_u32 v12, v3, 4, v12
    ds_read_b128 v[4:7], v12
    ds_read_b128 v[8:11], v12 offset:1152
    v_mov_b32 v13, 9216
    ds_read_b32 v14, v13
    v_lshlrev_b32 v2, 8, v2
    v_lshl_add_u32 v2, v3, 4, v2
    s_lshr_b32 s6, s2, 1
    s_lshl_b32 s6, s6, 14
    s_and_b32 s7, s2, 1
    s_lshl_b32 s7, s7, 7
    s_add_u32 s6, s6, s7
    s_waitcnt lgkmcnt(0)
    buffer_store_dwordx4 v[4:7], v2, {srd(R_WS)}, s6 offen sc1
    buffer_store_dwordx4 v[8:11], v2, {srd(R_WS)}, s6 offen offset:2048 sc1
    v_readfirstlane_b32 s6, v14
    """)
    arrive_dbg(o, D_ARR, 2, 3)
    o(f"""
    s_lshl_b32 s{S_ROLE}, s5, 5
    s_add_u32 s{S_ROLE}, s{S_ROLE}, s6
    s_cmp_ge_u32 s6, 32
    s_cbranch_scc1 P0_OVF
    s_cmp_lt_u32 s5, 8
    s_cbranch_scc1 P0_ROLE
    P0_OVF:
    """)
    wait_dbg(o, D_ARR, 256, 2, 3, 1)
    o(f"""
    s_cmp_lg_u32 s{S_W}, 0
    s_cbranch_scc1 P0_OV2
    v_mov_b32 v3, {D_OVF*4}
    v_mov_b32 v2, 1
    s_mov_b64 exec, 1
    global_atomic_add v4, v3, v2, s[{S_DBG}:{S_DBG+1}] sc0 sc1
    s_waitcnt vmcnt(0)
    v_mov_b32 v3, 9216
    ds_write_b32 v3, v4
    s_mov_b64 exec, -1
    s_waitcnt lgkmcnt(0)
    P0_OV2:
    s_barrier
    v_mov_b32 v3, 9216
    ds_read_b32 v4, v3
    v_lshlrev_b32 v3, 2, v0
    v_and_b32 v3, 31, v3
    global_load_dword v5, v3, s[{S_DBG}:{S_DBG+1}] sc1
    s_waitcnt vmcnt(0) lgkmcnt(0)
    v_readfirstlane_b32 s6, v4
    s_mov_b32 s7, 0
    P0_OV3:
    v_readlane_b32 s58, v5, s7
    s_min_u32 s58, s58, 32
    s_sub_u32 s59, 32, s58
    s_cmp_lt_u32 s6, s59
    s_cbranch_scc1 P0_OV4
    s_sub_u32 s6, s6, s59
    s_add_u32 s7, s7, 1
    s_cmp_lt_u32 s7, 8
    s_cbranch_scc1 P0_OV3
    s_endpgm
    P0_OV4:
    s_lshl_b32 s{S_ROLE}, s7, 5
    s_add_u32 s{S_ROLE}, s{S_ROLE}, s58
    s_add_u32 s{S_ROLE}, s{S_ROLE}, s6
    P0_ROLE:
    """)
```

```python
from common import *
V_OA, V_OB = 2, 3
STG = 128
def load_weights(o, rs, nt=16, dst=None):
    groups = [(m, t) for m in range(2) for t in range(nt)]
    AHEAD = 7
    def issue(i):
        m, t = groups[i]
        for j in range(8):
            o(f"s_mov_b32 s60, {(32*t+j)*rs}")
            o(f"buffer_load_dword v{STG+(i%8)*8+j}, v{V_OA+m}, {srd(R_A if m==0 else R_B)}, s60 offen")
    for i in range(min(AHEAD, len(groups))): issue(i)
    for i, (m, t) in enumerate(groups):
        rem = min(AHEAD-1, len(groups)-1-i)
        o(f"s_waitcnt vmcnt({rem*8})")
        b = STG+(i%8)*8
        for jj in range(4):
            o(f"v_perm_b32 v{4+jj}, v{b+2*jj+1}, v{b+2*jj}, s{S_PL}")
            o(f"v_perm_b32 v{8+jj}, v{b+2*jj+1}, v{b+2*jj}, s{S_PH}")
        for jj in range(4):
            o(f"v_accvgpr_write_b32 a{((2*m)*nt+t)*4+jj}, v{4+jj}")
            o(f"v_accvgpr_write_b32 a{((2*m+1)*nt+t)*4+jj}, v{8+jj}")
        if i+AHEAD < len(groups): issue(i+AHEAD)

ACC = 32
XB = 64
V_L16, V_LRD = 12, 13
S_SEG, S_R7, S_BUF, S_BLK, S_PREV = 64, 65, 66, 67, 68

def dma_seg(o, sseg, sbuf):
    o(f"s_lshl_b32 s60, s{sseg}, 15\ns_lshl_b32 s61, s{S_W}, 13\ns_add_u32 s60, s60, s61\ns_add_u32 s61, s61, s{sbuf}")
    for h in range(2):
        o(f"s_mov_b32 m0, s61\ns_nop 0")
        for i in range(4):
            o(f"buffer_load_dwordx4 v{V_L16}, {srd(R_WS)}, s60 offen offset:{i*1024} lds")
        if h == 0: o("s_add_u32 s60, s60, 4096\ns_add_u32 s61, s61, 4096")

def gelu_mul(o, g, u, t0, t1):
    o(f"v_mul_f32 v{t0}, v{g}, v{g}")
    o(f"v_fma_f32 v{t0}, v{t0}, s70, v14")
    o(f"v_mul_f32 v{t0}, v{t0}, v{g}")
    o(f"v_exp_f32 v{t0}, v{t0}\ns_nop 0")
    o(f"v_add_f32 v{t0}, 1.0, v{t0}")
    o(f"v_rcp_f32 v{t0}, v{t0}\ns_nop 0")
    o(f"v_mul_f32 v{g}, v{g}, v{t0}")

def gemm_loop(o, kind):
    L, E, NOD, NOF = o.lab("G"), o.lab("GE"), o.lab("GN"), o.lab("GF")
    o(f"v_lshlrev_b32 v{V_L16}, 4, v0\ns_mov_b32 s{S_BUF}, 0\ns_mov_b32 s{S_PREV}, -1")
    if kind == "GU":
        import math
        c0 = -2*math.sqrt(2/math.pi)*math.log2(math.e); c1 = c0*0.044715
        import struct
        f = lambda x: hex(struct.unpack("<I", struct.pack("<f", x))[0])
        o(f"s_mov_b32 s70, {f(c1)}\nv_mov_b32 v14, {f(c0)}")
    dma_seg(o, S_SEG, S_BUF)
    o("s_waitcnt vmcnt(0)")
    o(f"{L}:\ns_barrier")
    o(f"v_add_u32 v{V_LRD}, s{S_BUF}, v{V_L16}")
    def rd(t):
        for tt in range(2):
            o(f"ds_read_b128 v[{XB+(t%4)*8+tt*4}:{XB+(t%4)*8+tt*4+3}], v{V_LRD} offset:{tt*16384+t*1024}")
    for t in range(3): rd(t)
    o(f"s_add_u32 s69, s{S_SEG}, 7\ns_xor_b32 s{S_BUF}, s{S_BUF}, 32768\ns_cmp_ge_u32 s69, 64\ns_cbranch_scc1 {NOD}")
    dma_seg(o, 69, S_BUF)
    o(f"{NOD}:")
    for t in range(16):
        if t+3 < 16: rd(t+3)
        o(f"s_waitcnt lgkmcnt({2*min(3, 15-t)})")
        for tile in range(4):
            for tt in range(2):
                d = v(ACC+(tt*4+tile)*4, 4); w = a_((tile*16+t)*4, 4); x = v(XB+(t%4)*8+tt*4, 4)
                c = "0" if t == 0 else d
                if kind == "KV" and tile >= 2: o(f"v_mfma_f32_16x16x32_bf16 {d}, {x}, {w}, {c}")
                else: o(f"v_mfma_f32_16x16x32_bf16 {d}, {w}, {x}, {c}")
    o("s_waitcnt vmcnt(0)")
    if kind == "KV":
        o(f"s_cmp_lt_i32 s{S_PREV}, 0\ns_cbranch_scc1 {NOF}")
        kv_flag(o, S_PREV)
        o(f"{NOF}:")
    o("s_nop 7")
    A = lambda tt, tile, i: ACC+(tt*4+tile)*4+i
    P = 96
    if kind in ("KV", "QQ"):
        if kind == "KV":
            o(f"s_lshl_b32 s60, s{S_SEG}, 5\ns_add_u32 s60, s60, s{S_BLK}\ns_lshl_b32 s60, s60, 14\ns_add_u32 s60, s60, {KV}")
        else:
            o(f"s_lshl_b32 s60, s{S_SEG}, 4\ns_add_u32 s60, s60, s{S_BLK}\ns_lshl_b32 s60, s60, 14\ns_add_u32 s60, s60, {QX}")
        o(f"s_lshl_b32 s61, s{S_W}, 10\ns_add_u32 s61, s60, s61")
        for tt in range(2):
            for i in range(4): o(f"v_cvt_pk_bf16_f32 v{P+tt*4+i}, v{A(tt,0,i)}, v{A(tt,1,i)}")
            o(f"buffer_store_dwordx4 {v(P+tt*4,4)}, v{V_L16}, {srd(R_WS)}, s61 offen sc1")
            o("s_add_u32 s61, s61, 4096")
        if kind == "QQ":
            for tt in range(2):
                for i in range(4): o(f"v_cvt_pk_bf16_f32 v{P+8+tt*4+i}, v{A(tt,2,i)}, v{A(tt,3,i)}")
                o(f"buffer_store_dwordx4 {v(P+8+tt*4,4)}, v{V_L16}, {srd(R_WS)}, s61 offen sc1")
                o("s_add_u32 s61, s61, 4096")
        else:
            o(f"s_lshl_b32 s61, s{S_W}, 11\ns_add_u32 s61, s60, s61\ns_add_u32 s61, s61, 8192")
            for tau in range(2):
                for tt in range(2):
                    for i in range(2): o(f"v_cvt_pk_bf16_f32 v{P+8+tau*4+tt*2+i}, v{A(tt,2+tau,2*i)}, v{A(tt,2+tau,2*i+1)}")
                o(f"buffer_store_dwordx4 {v(P+8+tau*4,4)}, v{V_L16}, {srd(R_WS)}, s61 offen offset:{tau*1024} sc1")
    else:
        o(f"s_mul_i32 s60, s{S_SEG}, {2*56*1024}\ns_lshl_b32 s61, s{S_BLK}, 2\ns_add_u32 s61, s61, s{S_W}\ns_lshl_b32 s61, s61, 10")
        o(f"s_add_u32 s60, s60, s61\ns_add_u32 s60, s60, {HH}")
        for tt in range(2):
            for i in range(4):
                g0, g1, u0, u1 = A(tt,0,i), A(tt,1,i), A(tt,2,i), A(tt,3,i)
                def rnd2(x, y): o(f"v_cvt_pk_bf16_f32 v15, v{x}, v{y}\nv_lshlrev_b32 v{x}, 16, v15\nv_and_b32 v{y}, 0xffff0000, v15")
                rnd2(g0, g1); rnd2(u0, u1)
                gelu_mul(o, g0, u0, 16, 17); gelu_mul(o, g1, u1, 16, 17)
                rnd2(g0, g1)
                o(f"v_mul_f32 v{g0}, v{g0}, v{u0}\nv_mul_f32 v{g1}, v{g1}, v{u1}\nv_cvt_pk_bf16_f32 v{P+tt*4+i}, v{g0}, v{g1}")
            o(f"buffer_store_dwordx4 {v(P+tt*4,4)}, v{V_L16}, {srd(R_WS)}, s60 offen sc1")
            o(f"s_add_u32 s60, s60, {56*1024}")
    o(f"s_mov_b32 s{S_PREV}, s{S_SEG}\ns_add_u32 s{S_SEG}, s{S_SEG}, 7\ns_cmp_lt_u32 s{S_SEG}, 64\ns_cbranch_scc1 {L}")
    if kind == "KV":
        o("s_waitcnt vmcnt(0)")
        kv_flag(o, S_PREV)

def kv_flag(o, sseg):
    o(f"s_lshl_b32 s60, s{sseg}, 5\ns_add_u32 s60, s60, s{S_BLK}\ns_lshl_b32 s60, s60, 2\ns_add_u32 s60, s60, s{S_W}\ns_lshl_b32 s60, s60, 2\ns_add_u32 s60, s60, {FL_KV}")
    o(f"v_mov_b32 v15, 1\nv_mov_b32 v16, 0\ns_mov_b64 exec, 1\nbuffer_store_dword v15, v16, {srd(R_WS)}, s60 offen sc1\ns_mov_b64 exec, -1")

def woff(o, rs, sa, sb):
    o(f"v_lshrrev_b32 v4, 4, v0\nv_and_b32 v5, 15, v0\nv_mul_u32_u24 v4, {8*rs}, v4\nv_lshl_add_u32 v4, v5, 2, v4")
    o(f"v_add_u32 v{V_OA}, s{sa}, v4\nv_add_u32 v{V_OB}, s{sb}, v4")

def workers12(o, dbg):
    o(f"s_sub_u32 s71, s{S_ROLE}, 32\ns_mul_i32 s{S_BLK}, s71, 9363\ns_lshr_b32 s{S_BLK}, s{S_BLK}, 16\ns_mul_i32 s60, s{S_BLK}, 7\ns_sub_u32 s{S_R7}, s71, s60")
    mk_srd(o, R_A, S_WK, 512*4096*2); mk_srd(o, R_B, S_WV, 512*4096*2)
    o(f"s_lshl_b32 s60, s{S_BLK}, 8\ns_lshl_b32 s61, s{S_W}, 6\ns_add_u32 s61, s60, s61")
    woff(o, 8192, 61, 61)
    load_weights(o, 8192)
    stamp(o, 1, dbg)
    wait_dbg(o, D_ARR, 256, 4, 5, 2)
    stamp(o, 2, dbg)
    o(f"s_mov_b32 s{S_SEG}, s{S_R7}")
    gemm_loop(o, "KV")
    stamp(o, 3, dbg)
    o(f"s_mov_b32 s{S_SEG}, s{S_R7}\ns_cmp_ge_u32 s{S_BLK}, 30\ns_cbranch_scc1 P2_DONE\ns_cmp_ge_u32 s{S_BLK}, 16\ns_cbranch_scc1 P2_GU")
    mk_srd(o, R_A, S_WQ, 512*4096*2); mk_srd(o, R_B, S_WQ, 512*4096*2)
    o(f"s_lshl_b32 s60, s{S_BLK}, 9\ns_lshl_b32 s61, s{S_W}, 6\ns_add_u32 s61, s60, s61\ns_add_u32 s62, s61, 256")
    woff(o, 8192, 61, 62)
    load_weights(o, 8192)
    o("s_barrier")
    gemm_loop(o, "QQ")
    o("s_branch P2_DONE\nP2_GU:")
    mk_srd(o, R_A, S_GATE, 512*1792*2); mk_srd(o, R_B, S_UP, 512*1792*2)
    o(f"s_sub_u32 s{S_BLK}, s{S_BLK}, 16\ns_lshl_b32 s60, s{S_BLK}, 8\ns_lshl_b32 s61, s{S_W}, 6\ns_add_u32 s61, s60, s61")
    woff(o, 3584, 61, 61)
    load_weights(o, 3584)
    o("s_barrier")
    gemm_loop(o, "GU")
    o("P2_DONE:")
    arrive_dbg(o, D_P2, 4, 5)
    stamp(o, 4, dbg)
```

```python
from common import *
import math, struct
fbits = lambda x: hex(struct.unpack("<I", struct.pack("<f", x))[0])
L16, KMO, MSK, OUTO, T0, T1, FO, XR = 1, 2, 3, 4, 5, 6, 7, 8
LRD = 9
Z0 = 10
BUF = 16
ACC = 128
WD = 144
S_J, S_U, S_HD, S_EH, S_PAR, S_SC, S_QT = 64, 65, 66, 67, 68, 69, 70
def mf(o, d, a, b, c): o(f"v_mfma_f32_16x16x32_bf16 {v(d,4)}, {a}, {v(b,4)}, {c if isinstance(c,str) else v(c,4)}")

def load_w(o):
    STG = 16
    o(f"v_lshrrev_b32 v4, 4, v0\nv_and_b32 v5, 15, v0\nv_lshlrev_b32 v4, 13, v4\nv_lshl_add_u32 v4, v5, 2, v4")
    o(f"s_lshl_b32 s60, s{S_J}, 6\ns_lshl_b32 s61, s{S_W}, 20\ns_add_u32 s61, s61, s60\nv_add_u32 v2, s61, v4")
    o(f"s_mul_i32 s61, s{S_W}, {448*1024}\ns_add_u32 s61, s61, s60\nv_add_u32 v3, s61, v4")
    mk_srd(o, R_A, S_WO, 4096*512*2); mk_srd(o, R_B, S_DOWN, 1792*512*2)
    groups = [(1, t) for t in range(14)] + [(0, t) for t in range(32)]
    AHEAD = 7
    def issue(i):
        m, t = groups[i]
        for jq in range(2):
            o(f"s_mov_b32 s60, {(32*t+4*jq)*1024}")
            for j in range(4):
                o(f"buffer_load_dword v{STG+(i%8)*8+4*jq+j}, v{2+m}, {srd(R_A if m==0 else R_B)}, s60 offen offset:{j*1024}")
    for i in range(AHEAD): issue(i)
    for i, (m, t) in enumerate(groups):
        rem = min(AHEAD-1, len(groups)-1-i)
        o(f"s_waitcnt vmcnt({rem*8})")
        b = STG+(i%8)*8
        for tau in range(2):
            for jj in range(4):
                d = WD+(t*2+tau)*4+jj if m == 1 else 4+tau*4+jj
                o(f"v_perm_b32 v{d}, v{b+2*jj+1}, v{b+2*jj}, s{S_PL if tau==0 else S_PH}")
        if m == 0:
            for x in range(8): o(f"v_accvgpr_write_b32 a{t*8+x}, v{4+x}")
        if i+AHEAD < len(groups): issue(i+AHEAD)

def spin(o, sreg, code):
    L, D = o.lab("SP"), o.lab("SPD")
    o(f"s_mov_b32 s61, 0\n{L}:\nbuffer_load_dword v{T0}, v{T1}, {srd(R_WS)}, s{sreg} offen sc1\ns_add_u32 s61, s61, 1\ns_waitcnt vmcnt(0)")
    o(f"v_cmp_ne_u32 vcc, 1, v{T0}\ns_cbranch_vccz {D}\ns_cmp_lt_u32 s61, {SPIN_MAX}\ns_cbranch_scc1 {L}")
    spin_fail(o, code)
    o(f"{D}:")

def xl(o, op, r, t):
    for sw in ("v_permlane16_swap_b32", "v_permlane32_swap_b32"):
        o(f"v_mov_b32 v{t}, v{r}\ns_nop 1\n{sw} v{r}, v{t}\ns_nop 1\n{op} v{r}, v{r}, v{t}")

def workers3(o, dbg):
    o(f"s_sub_u32 s60, s{S_ROLE}, 32\ns_and_b32 s{S_J}, s60, 15\ns_lshr_b32 s{S_U}, s60, 4")
    load_w(o)
    stamp(o, 5, False)
    o(f"""
    v_lshlrev_b32 v{L16}, 4, v0
    v_lshrrev_b32 v20, 4, v0
    v_and_b32 v21, 15, v0
    v_lshrrev_b32 v22, 2, v21
    v_and_b32 v23, 1, v0
    v_lshl_add_u32 v22, v22, 1, v23
    v_mul_u32_u24 v22, 288, v22
    v_lshl_add_u32 v{KMO}, v20, 4, v22
    v_lshlrev_b32 v22, 2, v20
    v_sub_u32 v{MSK}, v22, v21
    v_lshlrev_b32 v22, 10, v21
    v_lshl_add_u32 v22, v20, 4, v22
    s_lshl_b32 s60, s{S_J}, 6
    s_lshl_b32 s61, s{S_W}, 2
    s_add_u32 s60, s60, s61
    v_add_u32 v{OUTO}, s60, v22
    v_lshlrev_b32 v{FO}, 2, v21
    v_add_u32 v{LRD}, s61, v{L16}
    v_mov_b32 v{Z0+1}, 0
    v_mov_b32 v{Z0+2}, 0
    s_lshr_b32 s60, s{S_W}, 1
    s_lshl_b32 s{S_HD}, s{S_J}, 1
    s_add_u32 s{S_HD}, s{S_HD}, s60
    s_and_b32 s{S_EH}, s{S_W}, 1
    s_mov_b32 s{S_PAR}, 0
    s_mov_b32 s{S_SC}, {fbits(128**-0.5*math.log2(math.e))}
    """)
    wait_dbg(o, D_P2, 224, T0, T1, 256)
    H, Q, K = BUF, BUF+56, BUF+72
    S0 = 120
    KM, V, VM, SM = BUF, BUF+16, BUF+32, BUF+36
    PB, OA = BUF+40, BUF+44
    o("P3_TOP:")
    o(f"s_lshr_b32 s62, s{S_U}, 1\ns_lshl_b32 s62, s62, 5\ns_add_u32 s62, s62, s{S_HD}\ns_and_b32 s{S_QT}, s{S_U}, 1")
    o(f"s_mul_i32 s60, s{S_U}, {56*1024}\ns_mul_i32 s61, s{S_W}, {14*1024}\ns_add_u32 s60, s60, s61\ns_add_u32 s60, s60, {HH}")
    for t in range(14):
        o(f"buffer_load_dwordx4 {v(H+4*t,4)}, v{L16}, {srd(R_WS)}, s60 offen offset:{(t%4)*1024}")
        if t % 4 == 3: o("s_add_u32 s60, s60, 4096")
    o(f"s_lshl_b32 s60, s62, 1\ns_add_u32 s60, s60, s{S_QT}\ns_lshl_b32 s60, s60, 12\ns_add_u32 s60, s60, {QX}")
    for c in range(4): o(f"buffer_load_dwordx4 {v(Q+4*c,4)}, v{L16}, {srd(R_WS)}, s60 offen offset:{c*1024}")
    o(f"s_lshl_b32 s63, s62, 14\ns_add_u32 s63, s63, {KV}\ns_add_u32 s60, s63, 4096")
    for x in range(8): o(f"buffer_load_dwordx4 {v(K+4*x,4)}, v{L16}, {srd(R_WS)}, s{63 if x < 4 else 60} offen offset:{(x%4)*1024}")
    o(f"s_lshl_b32 s60, s{S_U}, 14\nbuffer_load_dword v{XR}, v{OUTO}, {srd(R_X)}, s60 offen")
    for t in range(14):
        o(f"s_waitcnt vmcnt({13-t+13})")
        for tau in range(2): mf(o, ACC+8+4*tau, v(WD+(t*2+tau)*4, 4), H+4*t, "0" if t == 0 else ACC+8+4*tau)
    o("s_waitcnt vmcnt(1)")
    for c in range(4):
        for tl in range(2): mf(o, S0+4*tl, v(K+4*(tl*4+c), 4), Q+4*c, "0" if c == 0 else S0+4*tl)
    o(f"s_lshl_b32 s60, s{S_EH}, 12\ns_add_u32 s60, s60, s63\ns_add_u32 s60, s60, 8192")
    for x in range(4): o(f"buffer_load_dwordx4 {v(V+4*x,4)}, v{L16}, {srd(R_WS)}, s60 offen offset:{x*1024}")
    o(f"s_lshl_b32 s60, s{S_QT}, 4\nv_mov_b32 v{T1}, 0xff800000\ns_nop 1")
    for tl in range(2):
        for i in range(4):
            o(f"s_sub_i32 s61, s60, {16*tl+i}\nv_cmp_ge_i32 vcc, s61, v{MSK}\ns_nop 1\nv_cndmask_b32 v{S0+4*tl+i}, v{T1}, v{S0+4*tl+i}, vcc")
    o(f"v_max3_f32 v{Z0}, v{S0}, v{S0+1}, v{S0+2}\nv_max3_f32 v{Z0+3}, v{S0+4}, v{S0+5}, v{S0+6}\nv_max3_f32 v{Z0}, v{Z0}, v{S0+3}, v{S0+7}\nv_max_f32 v{Z0}, v{Z0}, v{Z0+3}")
    o(f"s_lshl_b32 s60, s62, 4\ns_add_u32 s60, s60, {FL_KVM}\nv_and_b32 v{T1}, 12, v{FO}")
    spin(o, 60, 512)
    o(f"s_mul_i32 s60, s62, {KVM_SZ}\ns_add_u32 s60, s60, {KVM}\ns_lshl_b32 s61, s{S_EH}, 10\ns_add_u32 s61, s61, s60")
    for c in range(4): o(f"buffer_load_dwordx4 {v(KM+4*c,4)}, v{KMO}, {srd(R_WS)}, s60 offen offset:{c*64}")
    o(f"buffer_load_dwordx4 {v(VM,4)}, v{L16}, {srd(R_WS)}, s61 offen offset:2560")
    for c in range(4):
        o(f"s_waitcnt vmcnt({4-c})")
        mf(o, SM, v(KM+4*c, 4), Q+4*c, "0" if c == 0 else SM)
    o(f"s_nop 7\nv_max3_f32 v{T0}, v{Z0}, v{SM}, v{SM+1}")
    xl(o, "v_max_f32", T0, T1)
    o(f"v_mul_f32 v{T0}, s{S_SC}, v{T0}")
    P = [S0+i for i in range(8)] + [SM, SM+1]
    for r in P: o(f"v_fma_f32 v{r}, v{r}, s{S_SC}, -v{T0}")
    for r in P: o(f"v_exp_f32 v{r}, v{r}")
    o(f"v_add_f32 v{T0}, v{P[0]}, v{P[1]}")
    for r in P[2:]: o(f"v_add_f32 v{T0}, v{T0}, v{r}")
    xl(o, "v_add_f32", T0, T1)
    o(f"v_rcp_f32 v{T0}, v{T0}\ns_nop 0")
    for r in P: o(f"v_mul_f32 v{r}, v{r}, v{T0}")
    for x in range(4): o(f"v_cvt_pk_bf16_f32 v{PB+x}, v{S0+2*x}, v{S0+2*x+1}")
    o(f"v_cvt_pk_bf16_f32 v{Z0}, v{SM}, v{SM+1}\nv_cvt_pk_bf16_f32 v{Z0+3}, v{SM}, v{SM+1}\ns_waitcnt vmcnt(0)\ns_nop 0")
    for x in range(4): mf(o, OA+4*x, v(V+4*x, 4), PB, "0")
    for x in range(4): o(f"v_mfma_f32_16x16x16_bf16 {v(OA+4*x,4)}, {v(VM+2*(x//2),2)}, {v(Z0+2*(x%2),2)}, {v(OA+4*x,4)}")
    o(f"s_lshl_b32 s63, s{S_U}, 17\ns_add_u32 s63, s63, {OO}\ns_lshl_b32 s60, s{S_HD}, 12\ns_lshl_b32 s61, s{S_EH}, 11\ns_add_u32 s60, s60, s61\ns_add_u32 s60, s60, s63")
    o("s_nop 3")
    for c in range(2):
        for i in range(4): o(f"v_cvt_pk_bf16_f32 v{KM+4*c+i}, v{OA+8*c+i}, v{OA+8*c+4+i}")
        o(f"buffer_store_dwordx4 {v(KM+4*c,4)}, v{L16}, {srd(R_WS)}, s60 offen offset:{c*1024} sc1")
    o(f"s_lshl_b32 s60, s{S_U}, 8\ns_add_u32 s60, s60, {FL_O}\ns_lshl_b32 s61, s{S_J}, 4\ns_add_u32 s61, s61, s60\ns_lshl_b32 s62, s{S_W}, 2\ns_add_u32 s61, s61, s62")
    o(f"v_mov_b32 v{T0}, 1\ns_waitcnt vmcnt(0)\ns_mov_b64 exec, 1\nbuffer_store_dword v{T0}, v{L16}, {srd(R_WS)}, s61 offen sc1\ns_mov_b64 exec, -1")
    o(f"s_lshl_b32 s62, s{S_W}, 6\ns_add_u32 s60, s60, s62\nv_mov_b32 v{T1}, v{FO}")
    spin(o, 60, 1024)
    o(f"s_lshl_b32 s60, s{S_W}, 15\ns_add_u32 s60, s60, s63")
    NR = 28
    def old(t):
        o(f"buffer_load_dwordx4 {v(BUF+4*(t%NR),4)}, v{L16}, {srd(R_WS)}, s60 offen offset:{(t%4)*1024}")
        if t % 4 == 3: o("s_add_u32 s60, s60, 4096")
    for t in range(NR): old(t)
    issued = NR
    for t in range(32):
        o(f"s_waitcnt vmcnt({issued-1-t})")
        for tau in range(2): mf(o, ACC+4*tau, a_(t*8+tau*4, 4), BUF+4*(t%NR), "0" if t == 0 else ACC+4*tau)
        if t >= 2 and issued < 32: old(issued); issued += 1
    o(f"s_lshl_b32 s60, s{S_W}, 12\ns_add_u32 s60, s60, s{S_PAR}\nv_add_u32 v{T0}, s60, v{L16}\nv_add_u32 v{T1}, s{S_PAR}, v{LRD}")
    for x in (2, 3): o(f"ds_write_b128 v{T0}, {v(ACC+4*x,4)} offset:{x*1024}")
    o("s_nop 3")
    for x in (0, 1): o(f"ds_write_b128 v{T0}, {v(ACC+4*x,4)} offset:{x*1024}")
    o("s_waitcnt lgkmcnt(0)\ns_barrier")
    R = BUF
    for half in range(2):
        for ww in range(2*half, 2*half+2):
            for x in range(4): o(f"ds_read_b32 v{R+ww*4+x}, v{T1} offset:{ww*4096+x*1024}")
        if half == 0: o("s_waitcnt lgkmcnt(1)")
    o(f"s_xor_b32 s{S_PAR}, s{S_PAR}, 16384\ns_lshl_b32 s60, s{S_U}, 14\ns_add_u32 s{S_U}, s{S_U}, 14\ns_waitcnt lgkmcnt(0)")
    for x in range(4): o(f"v_add_f32 v{R+x}, v{R+x}, v{R+4+x}\nv_add_f32 v{R+8+x}, v{R+8+x}, v{R+12+x}")
    for x in range(4): o(f"v_add_f32 v{R+x}, v{R+x}, v{R+8+x}")
    def rnd2(x, y): o(f"v_cvt_pk_bf16_f32 v{T0}, v{x}, v{y}\nv_lshlrev_b32 v{x}, 16, v{T0}\nv_and_b32 v{y}, 0xffff0000, v{T0}")
    rnd2(R, R+1); rnd2(R+2, R+3)
    o(f"v_lshlrev_b32 v{R+4}, 16, v{XR}\nv_and_b32 v{R+5}, 0xffff0000, v{XR}\nv_add_f32 v{R}, v{R}, v{R+4}\nv_add_f32 v{R+1}, v{R+1}, v{R+5}")
    rnd2(R, R+1)
    o(f"v_add_f32 v{R}, v{R}, v{R+2}\nv_add_f32 v{R+1}, v{R+1}, v{R+3}\nv_cvt_pk_bf16_f32 v{T0}, v{R}, v{R+1}")
    o(f"buffer_store_dword v{T0}, v{OUTO}, {srd(R_OUT)}, s60 offen")
    o(f"s_waitcnt vmcnt(0)")
    if dbg:
        o(f"s_memrealtime s[62:63]\ns_waitcnt lgkmcnt(0)\nv_mov_b32 v{T0}, s62\ns_lshl_b32 s62, s{S_ROLE}, 2\ns_add_u32 s62, s62, s{S_W}\ns_lshl_b32 s62, s62, 7")
        o(f"s_mul_i32 s63, s{S_U}, 4682\ns_lshr_b32 s63, s63, 16\ns_lshl_b32 s63, s63, 2\ns_add_u32 s62, s62, s63\ns_add_u32 s62, s62, {TS+7*4}\nv_mov_b32 v{T1}, 0\nbuffer_store_dword v{T0}, v{T1}, {srd(R_WS)}, s62 offen\ns_waitcnt vmcnt(0)")
    o(f"s_cmp_lt_u32 s{S_U}, 128\ns_cbranch_scc1 P3_TOP")
```

```python
from common import *
import math, struct
fbits = lambda x: hex(struct.unpack("<I", struct.pack("<f", x))[0])
L_K, L_O, L_QK, L_WV0, L_STR = 0, 8192, 10240, 16384, 36864
LW_V, LW_M = 32768, 34816
QROW = 288; KOFF = 8*QROW
L16, IDX, WL, QKW, XQ, XK, OW, RSR, AGW, FLG = 1, 2, 3, 4, 5, 6, 7, 8, 9, 10
T0, T1 = 0, 11
SEL = 12
MA = 16
QA = 48
KA = 56
VA = 72
XQR = 80
WIN = 96
S_H, S_S, S_AG, S_RSW, S_RSR, S_RSR2, S_KVM, S_KV, S_FKV, S_FKM, S_AGW = 64, 65, 66, 67, 68, 69, 70, 71, 74, 75, 76
S_HM = 72
S_SC = 77
S_O1, S_O2, S_O3 = 78, 79, 80
S_M0K, S_M0V = 81, 82
INWIN = {"q": (0, 1), "k": (2, 3), "v": (6, 7)}
res = {}
def _alloc():
    lst = []
    for mname in "qkv":
        for i in range(8):
            if i in INWIN[mname]: continue
            for tau in range(2): lst.append((mname, i, tau))
    for tl in range(6):
        for kp in range(2): lst.append(("o", tl, kp))
    for n, key in enumerate(lst):
        res[key] = ("a", n*8) if n < 32 else ("v", 128+(n-32)*8)
_alloc()
def winslot(mname, i, j):
    return (i-INWIN[mname][0])*2+j if mname != "o" else (i-6)*2+j
def opnd(mname, i, j):
    if (mname, i, j) in res:
        k, b = res[(mname, i, j)]; return f"{k}[{b}:{b+7}]"
    b = WIN+8*winslot(mname, i, j); return f"v[{b}:{b+7}]"
MIDX = {"q": 0, "k": 1, "v": 2, "o": 3}
def win_load(o, mname):
    for x in range(8):
        o(f"ds_read_b128 {v(WIN+4*x,4)}, v{WL} offset:{MIDX[mname]*8192+x*1024}")
def smf(o, d, a, b): o(f"v_smfmac_f32_16x16x64_bf16 {v(d,4)}, {v(a,4)}, {b}, v{IDX}")
def mf(o, d, a, b, c): o(f"v_mfma_f32_16x16x32_bf16 {v(d,4)}, {v(a,4)}, {v(b,4)}, {c if isinstance(c,str) else v(c,4)}")

def load_weights(o):
    STG, TMP = 16, 80
    o(f"""
    v_lshrrev_b32 v13, 5, v0
    v_bfe_u32 v14, v0, 4, 1
    v_and_b32 v15, 15, v0
    v_lshlrev_b32 v12, 18, v13
    v_lshl_add_u32 v12, v14, 16, v12
    v_lshl_add_u32 v12, v15, 2, v12
    s_lshl_b32 s60, s{S_H}, 8
    s_lshl_b32 s61, s{S_W}, 6
    s_add_u32 s60, s60, s61
    v_add_u32 v12, s60, v12
    v_lshlrev_b32 v11, 13, v13
    v_lshl_add_u32 v11, v14, 15, v11
    v_lshl_add_u32 v11, v15, 4, v11
    s_lshl_b32 s60, s{S_H}, 17
    s_lshl_b32 s61, s{S_W}, 8
    s_add_u32 s60, s60, s61
    v_add_u32 v11, s60, v11
    """)
    for j in range(4): o(f"s_xor_b32 s{84+j}, s{S_W}, {j}\ns_lshl_b32 s{84+j}, s{84+j}, 20")
    groups = [(m, i) for m in "qkv" for i in range(8)] + [("o", x) for x in range(8)]
    def issue(n):
        m, i = groups[n]; b = STG+(n%4)*16
        if m == "o":
            if i == 0: mk_srd(o, R_B, S_WO, 4096*512*2)
            for y in range(2):
                kp, jj = (2*i+y)//8, (2*i+y)%8
                for bb in range(2):
                    e = 64*kp+16*(jj//4)+4*((jj%4)//2)+2*bb+(jj%2)
                    o(f"s_mov_b32 s60, {e*1024}\nbuffer_load_dwordx4 {v(b+y*8+bb*4,4)}, v11, {srd(R_B)}, s60 offen")
            return 4
        if i == 0: mk_srd(o, R_A if m != "k" else R_B, {"q": S_WQ, "k": S_WK, "v": S_WV}[m], 512*4096*2)
        for jj in range(8):
            for bb in range(2):
                d = 4*(i%2)+64*(jj//4)+16*(jj%2)+2*((jj%4)//2)+bb
                o(f"s_add_u32 s60, s{84+i//2}, {d*8192}\nbuffer_load_dword v{b+2*jj+bb}, v12, {srd(R_A if m != 'k' else R_B)}, s60 offen")
        return 16
    cnt = {}
    AH = 3
    for n in range(AH): cnt[n] = issue(n)
    for n, (m, i) in enumerate(groups):
        o(f"s_waitcnt vmcnt({sum(cnt[x] for x in range(n+1, min(n+AH, len(groups))))})")
        b = STG+(n%4)*16
        if m == "o":
            for y in range(2):
                kp, jj = (2*i+y)//8, (2*i+y)%8
                for tl in range(8):
                    src = f"v{b+y*8+4+tl//2}, v{b+y*8+tl//2}, s{S_PL if tl%2==0 else S_PH}"
                    if ("o", tl, kp) in res:
                        k, r = res[("o", tl, kp)]; assert k == "v"
                        o(f"v_perm_b32 v{r+jj}, {src}")
                    else: o(f"v_perm_b32 v{WIN+8*winslot('o',tl,kp)+jj}, {src}")
        else:
            for tau in range(2):
                key = (m, i, tau)
                direct = key in res and res[key][0] == "v"
                for jj in range(8):
                    dst = res[key][1]+jj if direct else TMP+tau*8+jj
                    o(f"v_perm_b32 v{dst}, v{b+2*jj+1}, v{b+2*jj}, s{S_PL if tau==0 else S_PH}")
                if key not in res:
                    for x in range(2):
                        o(f"ds_write_b128 v{WL}, {v(TMP+tau*8+4*x,4)} offset:{MIDX[m]*8192+(winslot(m,i,tau)*2+x)*1024}")
                elif not direct:
                    for jj in range(8): o(f"v_accvgpr_write_b32 a{res[key][1]+jj}, v{TMP+tau*8+jj}")
            if (m, i, 0) not in res: o("s_waitcnt lgkmcnt(0)")
        if n+AH < len(groups): cnt[n+AH] = issue(n+AH)
    for x in range(8): o(f"ds_write_b128 v{WL}, {v(WIN+4*x,4)} offset:{3*8192+x*1024}")
    o("s_waitcnt lgkmcnt(0)")

def kv_dma(o):
    o(f"s_mov_b32 m0, s{S_M0K}\ns_add_u32 s60, s{S_KV}, 8192")
    for i in range(2): o(f"buffer_load_dwordx4 v{L16}, {srd(R_WS)}, s{S_KV} offen offset:{i*1024} lds")
    o(f"s_mov_b32 m0, s{S_M0V}\ns_nop 0")
    for i in range(2): o(f"buffer_load_dwordx4 v{L16}, {srd(R_WS)}, s60 offen offset:{i*1024} lds")

def flag_load(o):
    o(f"v_and_b32 v{T0}, 48, v{L16}\nv_lshrrev_b32 v{T0}, 2, v{T0}\nbuffer_load_dword v{FLG}, v{T0}, {srd(R_WS)}, s{S_FKV} offen sc1")
def flag_wait(o, n, code):
    L, D = o.lab("FW"), o.lab("FWD")
    o(f"s_mov_b32 s61, 0\ns_waitcnt vmcnt({n})\n{L}:\nv_cmp_ne_u32 vcc, 1, v{FLG}\ns_cbranch_vccz {D}")
    flag_load(o)
    o(f"s_waitcnt vmcnt(0)\ns_add_u32 s61, s61, 1\ns_cmp_lt_u32 s61, {SPIN_MAX}\ns_cbranch_scc1 {L}")
    spin_fail(o, code)
    o(f"{D}:")

def poll(o, r, vo, so1, so2, off2, code):
    L, D = o.lab("PL"), o.lab("PLD")
    o(f"s_mov_b32 s61, 0\n{L}:")
    o(f"buffer_load_dwordx4 {v(r,4)}, v{vo}, {srd(R_WS)}, s{so1} offen sc1")
    o(f"buffer_load_dwordx4 {v(r+4,4)}, v{vo}, {srd(R_WS)}, s{so2} offen offset:{off2} sc1")
    o(f"s_add_u32 s61, s61, 1\ns_waitcnt vmcnt(1)")
    o(f"v_max3_u32 v{T0}, v{r}, v{r+1}, v{r+2}\ns_waitcnt vmcnt(0)\nv_max3_u32 v{T1}, v{r+4}, v{r+5}, v{r+6}")
    o(f"v_max3_u32 v{T0}, v{T0}, v{r+3}, v{r+7}\nv_max_u32 v{T0}, v{T0}, v{T1}\nv_cmp_eq_u32 vcc, -1, v{T0}\ns_cbranch_vccz {D}")
    o(f"s_cmp_lt_u32 s61, {SPIN_MAX}\ns_cbranch_scc1 {L}")
    spin_fail(o, code)
    o(f"{D}:")

def zero(o, b, n):
    for i in range(n): o(f"v_mov_b32 v{b+i}, 0")

NP = 9
def step_loop(o, sc, dbg):
    TOP, FIN = o.lab("RT"), o.lab("RF")
    prof = dbg and sc == ""
    def tm(i):
        if prof: o(f"s_memtime s[{84+2*i}:{85+2*i}]")
    if prof:
        for i in range(NP): o(f"s_mov_b32 s{40+i}, 0")
    o(f"{TOP}:")
    tm(0)
    zero(o, QA, 16); zero(o, VA, 8)
    for j, so in enumerate((S_O1, S_O2, S_O3)): o(f"v_add_u32 v{64+j}, s{so}, v{WL}")
    poll(o, MA, L16, S_AG, S_AG, 1024, 4)
    tm(1)
    o(f"ds_write_b128 v{WL}, {v(MA,4)} offset:{LW_M}\nds_write_b128 v{WL}, {v(MA+4,4)} offset:{LW_M+1024}")
    for tau in range(2): smf(o, QA+4*tau, MA, opnd("q", 0, tau))
    o(f"v_mov_b32 v{T1}, 1\ns_mov_b64 exec, 1\nbuffer_store_dword v{T1}, v{L16}, {srd(R_WS)}, s{S_FKM} offen sc1\ns_mov_b64 exec, -1")
    flag_load(o)
    o("s_nop 1")
    for tau in range(2): smf(o, QA+4*tau, MA+4, opnd("q", 1, tau))
    o("s_waitcnt lgkmcnt(0)\ns_barrier")
    tm(2)
    for j in range(3):
        for x in range(2): o(f"ds_read_b128 {v(MA+8+8*j+4*x,4)}, v{64+j} offset:{LW_M+x*1024}")
    for i in range(2):
        for tau in range(2): smf(o, KA+4*tau, MA+4*i, opnd("k", i, tau))
    win_load(o, "k")
    for i in range(2, 8):
        o(f"s_waitcnt lgkmcnt({8+7-i})")
        for tau in range(2): smf(o, QA+4*tau, MA+4*i, opnd("q", i, tau))
    o("s_waitcnt lgkmcnt(0)")
    def fin(acc, off):
        o(f"v_pk_add_f32 {v(acc,2)}, {v(acc,2)}, {v(acc+2,2)}\nv_pk_add_f32 {v(acc+4,2)}, {v(acc+4,2)}, {v(acc+6,2)}")
        o(f"v_cvt_pk_bf16_f32 v{T0}, v{acc}, v{acc+4}\nv_cvt_pk_bf16_f32 v{T1}, v{acc+1}, v{acc+5}")
        o(f"ds_write_b32 v{QKW}, v{T0} offset:{off}\nds_write_b32 v{QKW}, v{T1} offset:{off+QROW}")
    ks = [(i, tau) for i in range(2, 8) for tau in range(2)]
    kz = lambda n: smf(o, KA+4*ks[n][1], MA+4*ks[n][0], opnd("k", *ks[n]))
    kz(0); kz(1)
    fin(QA, 0)
    kz(2); kz(3); kz(4)
    for x in range(8): o(f"ds_read_b128 {v(WIN+4*x,4)}, v{L16} offset:{L_K+x*1024}")
    kz(5)
    o("s_waitcnt lgkmcnt(8)\ns_barrier")
    tm(3)
    for c in range(4): o(f"ds_read_b128 {v(XQR+4*c,4)}, v{XQ} offset:{c*64}")
    for n in range(6, 12): kz(n)
    o("s_waitcnt lgkmcnt(0)")
    sx = [(c, tl) for c in range(4) for tl in range(2)]
    sz = lambda n: mf(o, QA+4*sx[n][1], WIN+4*(sx[n][1]*4+sx[n][0]), XQR+4*sx[n][0], "0" if sx[n][0] == 0 else QA+4*sx[n][1])
    sz(0); sz(1)
    fin(KA, KOFF)
    o(f"buffer_store_dword v{T0}, v{QKW}, {srd(R_WS)}, s{S_KVM} offen sc1\nbuffer_store_dword v{T1}, v{QKW}, {srd(R_WS)}, s{S_KVM} offen offset:{QROW} sc1")
    sz(2); sz(3); sz(4)
    o("s_waitcnt lgkmcnt(0)\ns_barrier")
    tm(4)
    for c in range(4): o(f"ds_read_b128 {v(KA+4*c,4)}, v{XK} offset:{KOFF+c*64}")
    sz(5); sz(6); sz(7)
    vs = [(i, tau) for i in range(8) for tau in range(2)]
    vz = lambda n: smf(o, VA+4*vs[n][1], MA+4*vs[n][0], opnd("v", *vs[n]))
    vz(0)
    win_load(o, "v")
    vz(1)
    o(f"v_max3_f32 v{T0}, v{QA}, v{QA+1}, v{QA+2}\nv_max3_f32 v{T1}, v{QA+4}, v{QA+5}, v{QA+6}\nv_max3_f32 v{T0}, v{T0}, v{QA+3}, v{QA+7}\nv_max_f32 v{T0}, v{T0}, v{T1}")
    for i in range(4): o(f"v_cndmask_b32 v{QA+i}, v{QA+i}, v{QA+4+i}, s[{S_HM}:{S_HM+1}]")
    o(f"v_mov_b32 v{T1}, v{T0}\ns_waitcnt lgkmcnt(8)")
    SM = QA+4
    mf(o, SM, KA, XQR, "0")
    o(f"v_permlane16_swap_b32 v{T0}, v{T1}")
    mf(o, SM, KA+4, XQR+4, SM)
    o(f"v_max_f32 v{T0}, v{T0}, v{T1}")
    mf(o, SM, KA+8, XQR+8, SM); mf(o, SM, KA+12, XQR+12, SM)
    vz(2); vz(3)
    VX = KA
    for tau in range(2): o(f"ds_read_b128 {v(VX+4*tau,4)}, v{WL} offset:{LW_V+tau*1024}")
    o(f"v_max3_f32 v{T0}, v{T0}, v{SM}, v{SM+1}\nv_max3_f32 v{T0}, v{T0}, v{SM+2}, v{SM+3}\nv_mov_b32 v{T1}, v{T0}")
    vz(4)
    o(f"s_nop 0\nv_permlane32_swap_b32 v{T0}, v{T1}\ns_nop 1\nv_max_f32 v{T0}, v{T0}, v{T1}\nv_mul_f32 v{T0}, s{S_SC}, v{T0}")
    vz(5)
    for i in range(6): o(f"v_fma_f32 v{QA+i}, v{QA+i}, s{S_SC}, -v{T0}")
    vz(6)
    for i in range(6):
        o(f"v_exp_f32 v{QA+i}, v{QA+i}")
        if i in (0, 1, 2, 3, 4): vz(7+i)
    PB, PM = XQR, XQR+4
    o("s_waitcnt lgkmcnt(0)")
    vz(12)
    o(f"v_cvt_pk_bf16_f32 v{T0}, v{QA}, v{QA+1}\nv_cvt_pk_bf16_f32 v{T1}, v{QA+2}, v{QA+3}\nv_cvt_pk_bf16_f32 v{PM+2}, v{QA+4}, v{QA+5}")
    vz(13)
    for x, (src, qp) in enumerate(((T0, "[0,1,0,1]"), (T1, "[0,1,0,1]"), (T0, "[2,3,2,3]"), (T1, "[2,3,2,3]"))):
        o(f"v_mov_b32_dpp v{PB+x}, v{src} quad_perm:{qp} row_mask:0xf bank_mask:0xf")
    vz(14)
    o(f"v_cndmask_b32 v{PM}, v{PM+2}, 0, s[{S_HM}:{S_HM+1}]\nv_cndmask_b32 v{PM+1}, 0, v{PM+2}, s[{S_HM}:{S_HM+1}]")
    vz(15)
    O0, O1, OM, VM = 64, 68, 88, 92
    mf(o, O0, VX, PB, "0")
    o(f"s_add_u32 s60, s{S_KVM}, {2560+(L_QK-L_O)}")
    o(f"v_add_f32 v{QA+4}, v{QA+4}, v{QA+5}\nv_add_f32 v{QA}, v{QA}, v{QA+1}\nv_add_f32 v{QA+2}, v{QA+2}, v{QA+3}")
    mf(o, O1, VX+4, PB, "0")
    o(f"v_pk_add_f32 {v(VA,2)}, {v(VA,2)}, {v(VA+2,2)}\nv_pk_add_f32 {v(VA+4,2)}, {v(VA+4,2)}, {v(VA+6,2)}")
    o(f"v_cvt_pk_bf16_f32 v{VM}, v{VA}, v{VA+1}\nv_cvt_pk_bf16_f32 v{VM+1}, v{VA+4}, v{VA+5}")
    o(f"v_fma_f32 v{QA}, v{QA+4}, 0.5, v{QA}\nv_add_f32 v{T0}, v{QA}, v{QA+2}")
    o(f"v_mfma_f32_16x16x16_bf16 {v(OM,4)}, {v(VM,2)}, {v(PM,2)}, 0")
    o(f"buffer_store_dwordx2 {v(VM,2)}, v{OW}, {srd(R_WS)}, s60 offen sc1")
    o(f"v_add_f32_dpp v{T0}, v{T0}, v{T0} quad_perm:[2,3,0,1] row_mask:0xf bank_mask:0xf")
    o(f"s_cmp_eq_u32 s{S_S}, 63\ns_cbranch_scc1 {FIN}")
    win_load(o, "o")
    o(f"v_mov_b32 v{T1}, v{T0}\ns_nop 1\nv_permlane16_swap_b32 v{T0}, v{T1}\ns_nop 1\nv_add_f32 v{T0}, v{T0}, v{T1}")
    o(f"v_mov_b32 v{T1}, v{T0}\ns_nop 1\nv_permlane32_swap_b32 v{T0}, v{T1}\ns_nop 1\nv_add_f32 v{T0}, v{T0}, v{T1}\nv_rcp_f32 v{T0}, v{T0}")
    for i in range(4): o(f"v_cndmask_b32 v{O0+i}, v{O0+i}, v{O1+i}, s[{S_HM}:{S_HM+1}]")
    o(f"v_pk_add_f32 {v(O0,2)}, {v(O0,2)}, {v(OM,2)}\nv_pk_add_f32 {v(O0+2,2)}, {v(O0+2,2)}, {v(OM+2,2)}")
    for i in range(4): o(f"v_mul_f32 v{O0+i}, v{O0+i}, v{T0}")
    o(f"v_cvt_pk_bf16_f32 v{O0}, v{O0}, v{O0+1}\nv_cvt_pk_bf16_f32 v{O0+1}, v{O0+2}, v{O0+3}")
    o(f"ds_write_b64 v{OW}, {v(O0,2)}")
    tm(5)
    zero(o, MA, 16)
    o("s_waitcnt lgkmcnt(0)\ns_barrier")
    OA = QA
    for kp in range(2): o(f"ds_read_b128 {v(OA+4*kp,4)}, v{L16} offset:{L_O+kp*1024}")
    zero(o, MA+16, 16)
    flag_wait(o, 3, 8)
    kv_dma(o)
    o("s_waitcnt lgkmcnt(0)")
    tm(6)
    PK = KA
    def pk(tl):
        a = MA+4*tl
        o(f"v_pk_add_f32 {v(a,2)}, {v(a,2)}, {v(a+2,2)}\nv_cvt_pk_bf16_f32 v{PK+tl}, v{a}, v{a+1}\nv_min_u32 v{PK+tl}, -2, v{PK+tl}")
    for tl in range(8):
        smf(o, MA+4*tl, OA, opnd("o", tl, 0)); smf(o, MA+4*tl, OA+4, opnd("o", tl, 1))
        if tl >= 1: pk(tl-1)
        if tl == 4: o(f"buffer_store_dwordx4 {v(PK,4)}, v{L16}, {srd(R_WS)}, s{S_RSW} offen{sc}")
    o("s_nop 5")
    pk(7)
    o(f"buffer_store_dwordx4 {v(PK+4,4)}, v{L16}, {srd(R_WS)}, s{S_RSW} offen offset:1024{sc}")
    win_load(o, "q")
    RB = XQR
    o(f"s_add_u32 s{S_S}, s{S_S}, 1\ns_add_u32 s{S_AG}, s{S_AG}, 8192\ns_add_u32 s{S_AGW}, s{S_AGW}, 8192\ns_add_u32 s{S_KVM}, s{S_KVM}, {32*KVM_SZ}")
    o(f"s_add_u32 s{S_KV}, s{S_KV}, {32*16384}\ns_add_u32 s{S_FKV}, s{S_FKV}, 512\ns_add_u32 s{S_FKM}, s{S_FKM}, 512\ns_xor_b32 s{S_RSW}, s{S_RSW}, {RS_SLOT}")
    tm(7)
    poll(o, RB, RSR, S_RSR, S_RSR2, 0, 16)
    tm(8)
    RD = 88
    mf(o, RD, SEL, RB, "0"); mf(o, RD, SEL, RB+4, RD)
    o("s_nop 7")
    for sh in (4, 8):
        for i in range(2): o(f"v_add_f32_dpp v{RD+i}, v{RD+i}, v{RD+i} row_ror:{sh} row_mask:0xf bank_mask:0xf")
        if sh == 4: o("s_nop 0")
    o(f"v_cvt_pk_bf16_f32 v{RD}, v{RD}, v{RD+1}\nv_min_u32 v{RD}, -2, v{RD}")
    o(f"buffer_store_dword v{RD}, v{AGW}, {srd(R_WS)}, s{S_AGW} offen{sc}")
    for i in range(4): o(f"v_mov_b32 v{RB+i}, -1")
    o(f"buffer_store_dwordx4 {v(RB,4)}, v{RSR}, {srd(R_WS)}, s{S_RSR} offen{sc}\nbuffer_store_dwordx4 {v(RB,4)}, v{RSR}, {srd(R_WS)}, s{S_RSR2} offen{sc}")
    o(f"s_xor_b32 s{S_RSR}, s{S_RSR}, {RS_SLOT}\ns_xor_b32 s{S_RSR2}, s{S_RSR2}, {RS_SLOT}\ns_waitcnt lgkmcnt(0)")
    if prof:
        o("s_memtime s[6:7]\ns_waitcnt lgkmcnt(0)")
        for i in range(NP):
            o(f"s_sub_u32 s5, s{84+2*i+2 if i < NP-1 else 6}, s{84+2*i}\ns_add_u32 s{40+i}, s{40+i}, s5")
    o(f"s_branch {TOP}")
    o(f"{FIN}:\ns_waitcnt vmcnt(0)\ns_add_u32 s{S_FKM}, s{S_FKM}, 512")
    o(f"v_mov_b32 v{T1}, 1\ns_mov_b64 exec, 1\nbuffer_store_dword v{T1}, v{L16}, {srd(R_WS)}, s{S_FKM} offen sc1\ns_mov_b64 exec, -1")

def recurrence(o, dbg):
    o(f"s_mov_b32 s{S_H}, s{S_ROLE}\ns_barrier")
    o(f"""
    v_lshlrev_b32 v{L16}, 4, v0
    v_lshrrev_b32 v20, 4, v0
    v_and_b32 v21, 15, v0
    v_bfe_u32 v22, v0, 1, 1
    v_cmp_eq_u32 s[{S_HM}:{S_HM+1}], 1, v22
    v_mov_b32 v23, 0x4444
    v_mov_b32 v24, 0xeeee
    s_mul_i32 s60, s{S_W}, {L_STR}
    v_cndmask_b32 v{IDX}, v23, v24, s[{S_HM}:{S_HM+1}]
    s_add_u32 s60, s60, {L_WV0}
    v_add_u32 v{WL}, s60, v{L16}
    s_add_u32 s{S_M0V}, s60, {LW_V}
    s_lshl_b32 s{S_M0K}, s{S_W}, 11
    v_mul_u32_u24 v23, {2*QROW}, v20
    v_lshl_add_u32 v23, v21, 2, v23
    s_lshl_b32 s61, s{S_W}, 6
    s_add_u32 s61, s61, {L_QK}
    v_add_u32 v{QKW}, s61, v23
    v_lshrrev_b32 v23, 2, v21
    v_and_b32 v24, 1, v0
    v_lshl_add_u32 v25, v23, 1, v24
    v_mul_u32_u24 v25, {QROW}, v25
    v_lshl_add_u32 v25, v20, 4, v25
    v_add_u32 v{XQ}, {L_QK}, v25
    v_xor_b32 v23, v23, v22
    v_lshl_add_u32 v25, v23, 1, v24
    v_mul_u32_u24 v25, {QROW}, v25
    v_lshl_add_u32 v25, v20, 4, v25
    v_add_u32 v{XK}, {L_QK}, v25
    s_lshr_b32 s61, s{S_W}, 1
    s_lshl_b32 s61, s61, 10
    s_and_b32 s62, s{S_W}, 1
    s_lshl_b32 s62, s62, 3
    s_add_u32 s61, s61, s62
    s_add_u32 s61, s61, {L_O}
    v_add_u32 v{OW}, s61, v{L16}
    v_lshrrev_b32 v23, 2, v0
    v_mul_u32_u24 v23, {RS_STRIDE}, v23
    v_and_b32 v24, 3, v0
    v_lshl_add_u32 v{RSR}, v24, 4, v23
    """)
    for j, so in enumerate((S_O1, S_O2, S_O3)):
        o(f"s_xor_b32 s61, s{S_W}, {j+1}\ns_sub_i32 s61, s61, s{S_W}\ns_mul_i32 s{so}, s61, {L_STR}")
    o(f"""
    v_lshrrev_b32 v23, 1, v20
    v_and_b32 v25, 1, v20
    v_and_b32 v26, 2, v0
    v_add_u32 v26, v26, v23
    v_lshlrev_b32 v26, 4, v26
    v_and_b32 v27, 1, v0
    v_lshl_add_u32 v26, v27, 3, v26
    v_lshl_add_u32 v26, v25, 2, v26
    v_cmp_gt_u32 vcc, 4, v21
    v_mov_b32 v27, 0x40000000
    s_nop 0
    v_cndmask_b32 v{AGW}, v27, v26, vcc
    """)
    o(f"""
    s_lshl_b32 s60, s{S_H}, 2
    s_add_u32 s60, s60, s{S_W}
    s_lshl_b32 s61, s60, 6
    s_add_u32 s{S_RSR}, s61, {RS}
    s_add_u32 s{S_RSR2}, s{S_RSR}, {16*RS_STRIDE}
    s_lshr_b32 s61, s60, 4
    s_bfe_u32 s62, s60, 0x20002
    s_and_b32 s63, s60, 3
    s_lshl_b32 s{S_AGW}, s61, 10
    s_lshl_b32 s58, s63, 8
    s_add_u32 s{S_AGW}, s{S_AGW}, s58
    s_lshl_b32 s58, s62, 6
    s_add_u32 s{S_AGW}, s{S_AGW}, s58
    s_add_u32 s{S_AGW}, s{S_AGW}, {AG}
    s_lshr_b32 s58, s61, 1
    s_lshl_b32 s58, s58, 8
    s_and_b32 s61, s61, 1
    s_lshl_b32 s61, s61, 3
    s_add_u32 s58, s58, s61
    s_lshl_b32 s63, s63, 6
    s_add_u32 s58, s58, s63
    s_lshl_b32 s62, s62, 11
    s_add_u32 s58, s58, s62
    v_lshlrev_b32 v26, 10, v23
    v_lshl_add_u32 v26, v24, 4, v26
    v_lshl_add_u32 v26, v25, 2, v26
    """)
    mk_srd(o, R_A, S_MEM0, 8192)
    o(f"buffer_load_dword v28, v26, {srd(R_A)}, s58 offen")
    for i in range(4): o(f"v_mov_b32 v{32+i}, -1")
    for so in (S_RSR, S_RSR2):
        o(f"buffer_store_dwordx4 v[32:35], v{RSR}, {srd(R_WS)}, s{so} offen sc1\ns_xor_b32 s60, s{so}, {RS_SLOT}\nbuffer_store_dwordx4 v[32:35], v{RSR}, {srd(R_WS)}, s60 offen sc1")
    o(f"v_lshrrev_b32 v26, 2, v0\nv_lshlrev_b32 v26, 13, v26\nv_lshl_add_u32 v26, v24, 4, v26")
    for i in range(4): o(f"s_add_u32 s60, s{S_AGW}, {8192*(1+16*i)}\nbuffer_store_dwordx4 v[32:35], v26, {srd(R_WS)}, s60 offen sc1")
    o(f"s_waitcnt vmcnt(8)\nv_min_u32 v28, -2, v28\nbuffer_store_dword v28, v{AGW}, {srd(R_WS)}, s{S_AGW} offen sc1")
    arrive_dbg(o, D_REC, 30, 31)
    load_weights(o)
    stamp(o, 1, False)
    o(f"""
    v_and_b32 v21, 15, v0
    v_lshrrev_b32 v23, 3, v21
    v_lshlrev_b32 v23, 4, v23
    v_mov_b32 v24, 0x3f80
    v_lshlrev_b32 v24, v23, v24
    v_and_b32 v25, 7, v21
    """)
    for dw, pat in enumerate((0, 1, 4, 5)):
        o(f"v_cmp_eq_u32 vcc, {pat}, v25\ns_nop 1\nv_cndmask_b32 v{SEL+dw}, 0, v24, vcc")
    o(f"""
    s_mov_b32 s{S_S}, 0
    s_mov_b32 s{S_SC}, {fbits(128**-0.5*math.log2(math.e))}
    s_lshl_b32 s60, s{S_W}, 11
    s_add_u32 s{S_AG}, s60, {AG}
    s_mul_i32 s61, s{S_H}, {RS_STRIDE}
    s_add_u32 s61, s61, s60
    s_add_u32 s{S_RSW}, s61, {RS}
    s_lshl_b32 s61, s{S_H}, 14
    s_add_u32 s61, s61, s60
    s_add_u32 s{S_KV}, s61, {KV}
    s_mul_i32 s61, s{S_H}, {KVM_SZ}
    s_add_u32 s{S_KVM}, s61, {KVM-L_QK}
    s_lshl_b32 s61, s{S_H}, 4
    s_add_u32 s{S_FKV}, s61, {FL_KV}
    s_lshl_b32 s62, s{S_W}, 2
    s_add_u32 s61, s61, s62
    s_add_u32 s{S_FKM}, s61, {FL_KVM-512}
    """)
    wait_dbg(o, D_ARR, 256, 20, 21, 32)
    wait_dbg(o, D_REC, 32, 20, 21, 64)
    o(f"v_mov_b32 v21, 0\nglobal_load_dword v20, v21, s[{S_DBG}:{S_DBG+1}] sc1")
    flag_load(o); flag_wait(o, 0, 128)
    kv_dma(o)
    win_load(o, "q")
    o(f"s_add_u32 s{S_KV}, s{S_KV}, {32*16384}\ns_add_u32 s{S_FKV}, s{S_FKV}, 512")
    o(f"v_readfirstlane_b32 s60, v20\ns_waitcnt lgkmcnt(0)\ns_cmp_lt_u32 s60, 32\ns_cbranch_scc1 REC_SLOW")
    if dbg: rstamp(o, 1)
    step_loop(o, "", dbg)
    if dbg:
        rstamp(o, 2)
        for i in range(NP): o(f"v_mov_b32 v{T0}, s{40+i}\nbuffer_store_dword v{T0}, v{T1}, {srd(R_WS)}, s62 offen offset:{(8-2+i)*4}")
    o("s_waitcnt vmcnt(0)\ns_endpgm\nREC_SLOW:")
    step_loop(o, " sc1", dbg)

def rstamp(o, slot):
    o(f"s_memrealtime s[62:63]\ns_waitcnt lgkmcnt(0)\nv_mov_b32 v{T0}, s62")
    o(f"s_lshl_b32 s62, s{S_ROLE}, 2\ns_add_u32 s62, s62, s{S_W}\ns_lshl_b32 s62, s62, 7\ns_add_u32 s62, s62, {TS+slot*4}")
    o(f"v_mov_b32 v{T1}, 0\nbuffer_store_dword v{T0}, v{T1}, {srd(R_WS)}, s62 offen")
```

```python
import sys
from common import *
import phase0, phase12
def build(dbg=False, rec=True, p3=True):
    ref = open(f"cdna_kernels/{NAME}.s.ref").read()
    hdr = ref[:ref.index("; @launch")]
    o = Asm()
    phase0.prologue(o, dbg)
    stamp(o, 0, dbg)
    o(f"s_cmp_lt_u32 s{S_ROLE}, 32\ns_cbranch_scc1 REC_ENTRY")
    phase12.workers12(o, dbg)
    if p3:
        import phase3; phase3.workers3(o, dbg)
    o("s_waitcnt vmcnt(0)\ns_endpgm")
    o("REC_ENTRY:")
    if rec:
        import rec as r; r.recurrence(o, dbg)
    o("s_waitcnt vmcnt(0)\nK_EXIT:")
    k = NAME + "_kernel"
    return (hdr + "; @launch grid=(256,1,1) block=(256,1,1) lds=163840\n"
        + f'.amdgcn_target "amdgcn-amd-amdhsa--gfx950"\n.text\n.globl {k}\n.p2align 8\n.type {k},@function\n{k}:\n'
        + o.text() + "s_endpgm\n"
        + f'.section .rodata,"a"\n.p2align 6\n.amdhsa_kernel {k}\n  .amdhsa_next_free_vgpr 512\n  .amdhsa_next_free_sgpr 102\n  .amdhsa_accum_offset 256\n'
        + "  .amdhsa_group_segment_fixed_size 0\n  .amdhsa_kernarg_size 112\n  .amdhsa_user_sgpr_count 2\n  .amdhsa_user_sgpr_kernarg_segment_ptr 1\n  .amdhsa_system_sgpr_workgroup_id_x 1\n.end_amdhsa_kernel\n")
if __name__ == "__main__":
    a = sys.argv[1:]
    out = a[0]
    open(out, "w").write(build(dbg=2 if "prof" in a else int("dbg" in a), rec="norec" not in a, p3="nop3" not in a))
```

```python
NAME = "parallel_sum__memory_aug_recurrent_mem_tr__geglu_ffn__prompt"
MB = 1 << 20
XN   = 0
KV   = 2*MB
QX   = 35*MB
HH   = 51*MB
OO   = 58*MB
KVM  = 85*MB
KVM_SZ = 4096
AG   = 81*MB
RS   = 82*MB
RS_STRIDE = 8192 + 256
RS_SLOT = 524288
FL   = 83*MB
FL_KV  = FL
FL_KVM = FL + 34816
FL_O   = FL + 69632
TS   = 84*MB
WS_BYTES = 268435456
D_CNT = 0
D_OVF = 16
D_ARR = 32
D_P2  = 40
D_REC = 48
D_ERR = 56

class Asm:
    def __init__(self):
        self.l = []
        self.n = 0
    def __call__(self, s):
        for x in s.split("\n"):
            x = x.strip()
            if x: self.l.append(("" if x.endswith(":") else "    ") + x)
    def lab(self, p="L"):
        self.n += 1
        return f"{p}_{self.n}"
    def text(self): return "\n".join(self.l) + "\n"

def v(a, n=1): return f"v{a}" if n == 1 else f"v[{a}:{a+n-1}]"
def a_(a, n=1): return f"a{a}" if n == 1 else f"a[{a}:{a+n-1}]"
def s_(a, n=1): return f"s{a}" if n == 1 else f"s[{a}:{a+n-1}]"

S_X, S_MEM0, S_WQ, S_WK, S_WV, S_WO = 8, 10, 12, 14, 16, 18
S_GATE, S_UP, S_DOWN, S_OUT, S_DBG, S_WS = 24, 26, 28, 30, 32, 34
R_WS, R_A, R_B, R_OUT, R_X = 36, 40, 44, 48, 52
S_W = 3
S_ROLE = 4
S_PL, S_PH = 56, 57
def srd(r): return f"s[{r}:{r+3}]"

def mk_srd(o, r, p, nbytes):
    o(f"s_mov_b32 s{r}, s{p}\ns_mov_b32 s{r+1}, s{p+1}\ns_mov_b32 s{r+2}, {nbytes}\ns_mov_b32 s{r+3}, 0x00020000")

def allreduce(o, op, regs, tmps):
    for sh in (8, 4, 2, 1):
        o("s_nop 1")
        for r in regs: o(f"{op}_dpp v{r}, v{r}, v{r} row_ror:{sh} row_mask:0xf bank_mask:0xf")
    for sw in ("v_permlane16_swap_b32", "v_permlane32_swap_b32"):
        for r, t in zip(regs, tmps): o(f"v_mov_b32 v{t}, v{r}")
        o("s_nop 1")
        for r, t in zip(regs, tmps): o(f"{sw} v{r}, v{t}")
        o("s_nop 1")
        for r, t in zip(regs, tmps): o(f"{op} v{r}, v{r}, v{t}")

SPIN_MAX = 200000
def spin_fail(o, code):
    o(f"v_mov_b32 v1, {code}\nv_mov_b32 v2, {D_ERR*4}\nglobal_atomic_or v2, v1, s[{S_DBG}:{S_DBG+1}] sc1\ns_waitcnt vmcnt(0)\ns_endpgm")

def wait_dbg(o, idx, target, vt, va, code):
    L, D = o.lab("WD"), o.lab("WDD")
    o(f"s_cmp_lg_u32 s{S_W}, 0\ns_cbranch_scc1 {D}")
    o(f"v_mov_b32 v{va}, {idx*4}\ns_mov_b32 s60, 0")
    o(f"{L}:")
    o(f"global_load_dword v{vt}, v{va}, s[{S_DBG}:{S_DBG+1}] sc1\ns_waitcnt vmcnt(0)")
    o(f"v_readfirstlane_b32 s61, v{vt}\ns_cmp_ge_u32 s61, {target}\ns_cbranch_scc1 {D}")
    o(f"s_add_u32 s60, s60, 1\ns_cmp_lt_u32 s60, {SPIN_MAX}\ns_cbranch_scc1 {L}")
    spin_fail(o, code)
    o(f"{D}:\ns_barrier")

def arrive_dbg(o, idx, vt, va):
    D = o.lab("AR")
    o(f"s_waitcnt vmcnt(0)\ns_barrier\ns_cmp_lg_u32 s{S_W}, 0\ns_cbranch_scc1 {D}")
    o(f"v_mov_b32 v{va}, {idx*4}\nv_mov_b32 v{vt}, 1\ns_mov_b64 exec, 1")
    o(f"global_atomic_add v{va}, v{vt}, s[{S_DBG}:{S_DBG+1}] sc1\ns_mov_b64 exec, -1")
    o(f"{D}:")

def stamp(o, slot, on):
    if not on: return
    o(f"s_memrealtime s[62:63]\ns_waitcnt lgkmcnt(0)\nv_mov_b32 v255, s62")
    o(f"s_lshl_b32 s62, s{S_ROLE}, 2\ns_add_u32 s62, s62, s{S_W}\ns_lshl_b32 s62, s62, 7\ns_add_u32 s62, s62, {TS+slot*4}")
    o(f"v_mov_b32 v254, 0\nbuffer_store_dword v255, v254, {srd(R_WS)}, s62 offen")
```

```python
from common import *
import math, struct
fbits = lambda x: hex(struct.unpack("<I", struct.pack("<f", x))[0])
L16, KMO, MSK, OUTO, T0, T1, FO, XR = 1, 2, 3, 4, 5, 6, 7, 8
LRD = 9
Z0 = 10
BUF = 16
ACC = 128
WD = 144
S_J, S_U, S_HD, S_EH, S_PAR, S_SC, S_QT = 64, 65, 66, 67, 68, 69, 70
def mf(o, d, a, b, c): o(f"v_mfma_f32_16x16x32_bf16 {v(d,4)}, {a}, {v(b,4)}, {c if isinstance(c,str) else v(c,4)}")

def load_w(o):
    STG = 16
    o(f"v_lshrrev_b32 v4, 4, v0\nv_and_b32 v5, 15, v0\nv_lshlrev_b32 v4, 13, v4\nv_lshl_add_u32 v4, v5, 2, v4")
    o(f"s_lshl_b32 s60, s{S_J}, 6\ns_lshl_b32 s61, s{S_W}, 20\ns_add_u32 s61, s61, s60\nv_add_u32 v2, s61, v4")
    o(f"s_mul_i32 s61, s{S_W}, {448*1024}\ns_add_u32 s61, s61, s60\nv_add_u32 v3, s61, v4")
    mk_srd(o, R_A, S_WO, 4096*512*2); mk_srd(o, R_B, S_DOWN, 1792*512*2)
    groups = [(1, t) for t in range(14)] + [(0, t) for t in range(32)]
    AHEAD = 7
    def issue(i):
        m, t = groups[i]
        for jq in range(2):
            o(f"s_mov_b32 s60, {(32*t+4*jq)*1024}")
            for j in range(4):
                o(f"buffer_load_dword v{STG+(i%8)*8+4*jq+j}, v{2+m}, {srd(R_A if m==0 else R_B)}, s60 offen offset:{j*1024}")
    for i in range(AHEAD): issue(i)
    for i, (m, t) in enumerate(groups):
        rem = min(AHEAD-1, len(groups)-1-i)
        o(f"s_waitcnt vmcnt({rem*8})")
        b = STG+(i%8)*8
        for tau in range(2):
            for jj in range(4):
                d = WD+(t*2+tau)*4+jj if m == 1 else 4+tau*4+jj
                o(f"v_perm_b32 v{d}, v{b+2*jj+1}, v{b+2*jj}, s{S_PL if tau==0 else S_PH}")
        if m == 0:
            for x in range(8): o(f"v_accvgpr_write_b32 a{t*8+x}, v{4+x}")
        if i+AHEAD < len(groups): issue(i+AHEAD)

def spin(o, sreg, code):
    L, D = o.lab("SP"), o.lab("SPD")
    o(f"s_mov_b32 s61, 0\n{L}:\nbuffer_load_dword v{T0}, v{T1}, {srd(R_WS)}, s{sreg} offen sc1\ns_add_u32 s61, s61, 1\ns_waitcnt vmcnt(0)")
    o(f"v_cmp_eq_u32 vcc, 0, v{T0}\ns_cbranch_vccz {D}\ns_cmp_lt_u32 s61, {SPIN_MAX}\ns_cbranch_scc1 {L}")
    spin_fail(o, code)
    o(f"{D}:")

def xl(o, op, r, t):
    for sw in ("v_permlane16_swap_b32", "v_permlane32_swap_b32"):
        o(f"v_mov_b32 v{t}, v{r}\ns_nop 1\n{sw} v{r}, v{t}\ns_nop 1\n{op} v{r}, v{r}, v{t}")

def workers3(o, dbg):
    o(f"s_sub_u32 s60, s{S_ROLE}, 32\ns_and_b32 s{S_J}, s60, 15\ns_lshr_b32 s{S_U}, s60, 4")
    load_w(o)
    stamp(o, 5, False)
    o(f"""
    v_lshlrev_b32 v{L16}, 4, v0
    v_lshrrev_b32 v20, 4, v0
    v_and_b32 v21, 15, v0
    v_lshrrev_b32 v22, 2, v21
    v_and_b32 v23, 1, v0
    v_lshl_add_u32 v22, v22, 1, v23
    v_lshlrev_b32 v22, 6, v22
    v_lshl_add_u32 v{KMO}, v20, 4, v22
    v_lshlrev_b32 v22, 2, v20
    v_sub_u32 v{MSK}, v22, v21
    v_lshlrev_b32 v22, 10, v21
    v_lshl_add_u32 v22, v20, 4, v22
    s_lshl_b32 s60, s{S_J}, 6
    s_lshl_b32 s61, s{S_W}, 2
    s_add_u32 s60, s60, s61
    v_add_u32 v{OUTO}, s60, v22
    v_lshlrev_b32 v{FO}, 2, v21
    v_add_u32 v{LRD}, s61, v{L16}
    v_mov_b32 v{Z0+1}, 0
    v_mov_b32 v{Z0+2}, 0
    s_lshr_b32 s60, s{S_W}, 1
    s_lshl_b32 s{S_HD}, s{S_J}, 1
    s_add_u32 s{S_HD}, s{S_HD}, s60
    s_and_b32 s{S_EH}, s{S_W}, 1
    s_mov_b32 s{S_PAR}, 0
    s_mov_b32 s{S_SC}, {fbits(128**-0.5*math.log2(math.e))}
    """)
    wait_dbg(o, D_P2, 224, T0, T1, 256)
    H, Q, K = BUF, BUF+56, BUF+72
    S0 = 120
    KM, V, VM, SM = BUF, BUF+16, BUF+32, BUF+36
    PB, OA = BUF+40, BUF+44
    o("P3_TOP:")
    o(f"s_lshr_b32 s62, s{S_U}, 1\ns_lshl_b32 s62, s62, 5\ns_add_u32 s62, s62, s{S_HD}\ns_and_b32 s{S_QT}, s{S_U}, 1")
    o(f"s_mul_i32 s60, s{S_U}, {56*1024}\ns_mul_i32 s61, s{S_W}, {14*1024}\ns_add_u32 s60, s60, s61\ns_add_u32 s60, s60, {HH}")
    for t in range(14):
        o(f"buffer_load_dwordx4 {v(H+4*t,4)}, v{L16}, {srd(R_WS)}, s60 offen offset:{(t%4)*1024}")
        if t % 4 == 3: o("s_add_u32 s60, s60, 4096")
    o(f"s_lshl_b32 s60, s62, 1\ns_add_u32 s60, s60, s{S_QT}\ns_lshl_b32 s60, s60, 12\ns_add_u32 s60, s60, {QX}")
    for c in range(4): o(f"buffer_load_dwordx4 {v(Q+4*c,4)}, v{L16}, {srd(R_WS)}, s60 offen offset:{c*1024}")
    o(f"s_lshl_b32 s63, s62, 14\ns_add_u32 s63, s63, {KV}\ns_add_u32 s60, s63, 4096")
    for x in range(8): o(f"buffer_load_dwordx4 {v(K+4*x,4)}, v{L16}, {srd(R_WS)}, s{63 if x < 4 else 60} offen offset:{(x%4)*1024}")
    o(f"s_lshl_b32 s60, s{S_U}, 14\nbuffer_load_dword v{XR}, v{OUTO}, {srd(R_X)}, s60 offen")
    for t in range(14):
        o(f"s_waitcnt vmcnt({13-t+13})")
        for tau in range(2): mf(o, ACC+8+4*tau, v(WD+(t*2+tau)*4, 4), H+4*t, "0" if t == 0 else ACC+8+4*tau)
    o("s_waitcnt vmcnt(1)")
    for c in range(4):
        for tl in range(2): mf(o, S0+4*tl, v(K+4*(tl*4+c), 4), Q+4*c, "0" if c == 0 else S0+4*tl)
    o(f"s_lshl_b32 s60, s{S_EH}, 12\ns_add_u32 s60, s60, s63\ns_add_u32 s60, s60, 8192")
    for x in range(4): o(f"buffer_load_dwordx4 {v(V+4*x,4)}, v{L16}, {srd(R_WS)}, s60 offen offset:{x*1024}")
    o(f"s_lshl_b32 s60, s{S_QT}, 4\nv_mov_b32 v{T1}, 0xff800000\ns_nop 1")
    for tl in range(2):
        for i in range(4):
            o(f"s_sub_i32 s61, s60, {16*tl+i}\nv_cmp_ge_i32 vcc, s61, v{MSK}\ns_nop 1\nv_cndmask_b32 v{S0+4*tl+i}, v{T1}, v{S0+4*tl+i}, vcc")
    o(f"v_max3_f32 v{Z0}, v{S0}, v{S0+1}, v{S0+2}\nv_max3_f32 v{Z0+3}, v{S0+4}, v{S0+5}, v{S0+6}\nv_max3_f32 v{Z0}, v{Z0}, v{S0+3}, v{S0+7}\nv_max_f32 v{Z0}, v{Z0}, v{Z0+3}")
    o(f"s_lshl_b32 s60, s62, 4\ns_add_u32 s60, s60, {FL_KVM}\nv_and_b32 v{T1}, 12, v{FO}")
    spin(o, 60, 512)
    o(f"s_mul_i32 s60, s62, {KVM_SZ}\ns_add_u32 s60, s60, {KVM}\ns_lshl_b32 s61, s{S_EH}, 10\ns_add_u32 s61, s61, s60")
    for c in range(4): o(f"buffer_load_dwordx4 {v(KM+4*c,4)}, v{KMO}, {srd(R_WS)}, s60 offen offset:{c*512}")
    o(f"buffer_load_dwordx4 {v(VM,4)}, v{L16}, {srd(R_WS)}, s61 offen offset:2048")
    for c in range(4):
        o(f"s_waitcnt vmcnt({4-c})")
        mf(o, SM, v(KM+4*c, 4), Q+4*c, "0" if c == 0 else SM)
    o(f"s_nop 7\nv_max3_f32 v{T0}, v{Z0}, v{SM}, v{SM+1}")
    xl(o, "v_max_f32", T0, T1)
    o(f"v_mul_f32 v{T0}, s{S_SC}, v{T0}")
    P = [S0+i for i in range(8)] + [SM, SM+1]
    for r in P: o(f"v_fma_f32 v{r}, v{r}, s{S_SC}, -v{T0}")
    for r in P: o(f"v_exp_f32 v{r}, v{r}")
    o(f"v_add_f32 v{T0}, v{P[0]}, v{P[1]}")
    for r in P[2:]: o(f"v_add_f32 v{T0}, v{T0}, v{r}")
    xl(o, "v_add_f32", T0, T1)
    o(f"v_rcp_f32 v{T0}, v{T0}\ns_nop 0")
    for r in P: o(f"v_mul_f32 v{r}, v{r}, v{T0}")
    for x in range(4): o(f"v_cvt_pk_bf16_f32 v{PB+x}, v{S0+2*x}, v{S0+2*x+1}")
    o(f"v_cvt_pk_bf16_f32 v{Z0}, v{SM}, v{SM+1}\nv_cvt_pk_bf16_f32 v{Z0+3}, v{SM}, v{SM+1}\ns_waitcnt vmcnt(0)\ns_nop 0")
    for x in range(4): mf(o, OA+4*x, v(V+4*x, 4), PB, "0")
    for x in range(4): o(f"v_mfma_f32_16x16x16_bf16 {v(OA+4*x,4)}, {v(VM+2*(x//2),2)}, {v(Z0+2*(x%2),2)}, {v(OA+4*x,4)}")
    o(f"s_lshl_b32 s63, s{S_U}, 17\ns_add_u32 s63, s63, {OO}\ns_lshl_b32 s60, s{S_HD}, 12\ns_lshl_b32 s61, s{S_EH}, 11\ns_add_u32 s60, s60, s61\ns_add_u32 s60, s60, s63")
    o("s_nop 3")
    for c in range(2):
        for i in range(4): o(f"v_cvt_pk_bf16_f32 v{KM+4*c+i}, v{OA+8*c+i}, v{OA+8*c+4+i}")
        o(f"buffer_store_dwordx4 {v(KM+4*c,4)}, v{L16}, {srd(R_WS)}, s60 offen offset:{c*1024} sc1")
    o(f"s_lshl_b32 s60, s{S_U}, 8\ns_add_u32 s60, s60, {FL_O}\ns_lshl_b32 s61, s{S_J}, 4\ns_add_u32 s61, s61, s60\ns_lshl_b32 s62, s{S_W}, 2\ns_add_u32 s61, s61, s62")
    o(f"v_mov_b32 v{T0}, 1\ns_waitcnt vmcnt(0)\ns_mov_b64 exec, 1\nbuffer_store_dword v{T0}, v{L16}, {srd(R_WS)}, s61 offen sc1\ns_mov_b64 exec, -1")
    o(f"s_lshl_b32 s62, s{S_W}, 6\ns_add_u32 s60, s60, s62\nv_mov_b32 v{T1}, v{FO}")
    spin(o, 60, 1024)
    o(f"s_lshl_b32 s60, s{S_W}, 15\ns_add_u32 s60, s60, s63")
    NR = 28
    def old(t):
        o(f"buffer_load_dwordx4 {v(BUF+4*(t%NR),4)}, v{L16}, {srd(R_WS)}, s60 offen offset:{(t%4)*1024}")
        if t % 4 == 3: o("s_add_u32 s60, s60, 4096")
    for t in range(NR): old(t)
    issued = NR
    for t in range(32):
        o(f"s_waitcnt vmcnt({issued-1-t})")
        for tau in range(2): mf(o, ACC+4*tau, a_(t*8+tau*4, 4), BUF+4*(t%NR), "0" if t == 0 else ACC+4*tau)
        if t >= 2 and issued < 32: old(issued); issued += 1
    o(f"s_lshl_b32 s60, s{S_W}, 12\ns_add_u32 s60, s60, s{S_PAR}\nv_add_u32 v{T0}, s60, v{L16}\nv_add_u32 v{T1}, s{S_PAR}, v{LRD}")
    for x in (2, 3): o(f"ds_write_b128 v{T0}, {v(ACC+4*x,4)} offset:{x*1024}")
    o("s_nop 3")
    for x in (0, 1): o(f"ds_write_b128 v{T0}, {v(ACC+4*x,4)} offset:{x*1024}")
    o("s_waitcnt lgkmcnt(0)\ns_barrier")
    R = BUF
    for half in range(2):
        for ww in range(2*half, 2*half+2):
            for x in range(4): o(f"ds_read_b32 v{R+ww*4+x}, v{T1} offset:{ww*4096+x*1024}")
        if half == 0: o("s_waitcnt lgkmcnt(1)")
    o(f"s_xor_b32 s{S_PAR}, s{S_PAR}, 16384\ns_lshl_b32 s60, s{S_U}, 14\ns_add_u32 s{S_U}, s{S_U}, 14\ns_waitcnt lgkmcnt(0)")
    for x in range(4): o(f"v_add_f32 v{R+x}, v{R+x}, v{R+4+x}\nv_add_f32 v{R+8+x}, v{R+8+x}, v{R+12+x}")
    for x in range(4): o(f"v_add_f32 v{R+x}, v{R+x}, v{R+8+x}")
    def rnd2(x, y): o(f"v_cvt_pk_bf16_f32 v{T0}, v{x}, v{y}\nv_lshlrev_b32 v{x}, 16, v{T0}\nv_and_b32 v{y}, 0xffff0000, v{T0}")
    rnd2(R, R+1); rnd2(R+2, R+3)
    o(f"v_lshlrev_b32 v{R+4}, 16, v{XR}\nv_and_b32 v{R+5}, 0xffff0000, v{XR}\nv_add_f32 v{R}, v{R}, v{R+4}\nv_add_f32 v{R+1}, v{R+1}, v{R+5}")
    rnd2(R, R+1)
    o(f"v_add_f32 v{R}, v{R}, v{R+2}\nv_add_f32 v{R+1}, v{R+1}, v{R+3}\nv_cvt_pk_bf16_f32 v{T0}, v{R}, v{R+1}")
    o(f"buffer_store_dword v{T0}, v{OUTO}, {srd(R_OUT)}, s60 offen")
    o(f"s_waitcnt vmcnt(0)")
    if dbg:
        o(f"s_memrealtime s[62:63]\ns_waitcnt lgkmcnt(0)\nv_mov_b32 v{T0}, s62\ns_lshl_b32 s62, s{S_ROLE}, 2\ns_add_u32 s62, s62, s{S_W}\ns_lshl_b32 s62, s62, 7")
        o(f"s_mul_i32 s63, s{S_U}, 4682\ns_lshr_b32 s63, s63, 16\ns_lshl_b32 s63, s63, 2\ns_add_u32 s62, s62, s63\ns_add_u32 s62, s62, {TS+7*4}\nv_mov_b32 v{T1}, 0\nbuffer_store_dword v{T0}, v{T1}, {srd(R_WS)}, s62 offen\ns_waitcnt vmcnt(0)")
    o(f"s_cmp_lt_u32 s{S_U}, 128\ns_cbranch_scc1 P3_TOP")
```

```python
from common import *
import math, struct, os
X = os.environ.get('X','').split(',')
fbits = lambda x: hex(struct.unpack("<I", struct.pack("<f", x))[0])
L_K, L_O, L_QK, L_WV0, L_STR = 0, 8192, 10240, 16384, 36864
LW_V, LW_M = 32768, 34816
QROW = 288; KOFF = 8*QROW
L16, IDX, WL, QKW, XQ, XK, OW, RSR, AGW, FLG = 1, 2, 3, 4, 5, 6, 7, 8, 9, 10
T0, T1 = 0, 11
SEL = 12
MA = 16
QA = 48
KA = 56
VA = 72
XQR = 80
WIN = 96
S_H, S_S, S_AG, S_RSW, S_RSR, S_RSR2, S_KVM, S_KV, S_FKV, S_FKM, S_AGW = 64, 65, 66, 67, 68, 69, 70, 71, 74, 75, 76
S_HM = 72
S_SC = 77
S_O1, S_O2, S_O3 = 78, 79, 80
S_M0K, S_M0V = 81, 82
S_RSW2 = S_RSR2
S_PAR, S_PA, S_PB, S_PC, S_FD = 8, 9, 10, 11, 12
X2 = 64
WINL = [("q",0,0,WIN),("q",0,1,WIN+8),("q",1,0,WIN+16),("q",1,1,WIN+24),("k",0,0,XQR),("k",0,1,XQR+8),
        ("v",6,0,WIN),("v",6,1,WIN+8),("v",7,0,WIN+16),("v",7,1,WIN+24),
        ("o",5,0,X2),("o",5,1,XQR+8),("o",6,0,WIN),("o",6,1,WIN+8),("o",7,0,WIN+16),("o",7,1,WIN+24)]
win = {x[:3]: (n, x[3]) for n, x in enumerate(WINL)}
res = {}
def _alloc():
    lst = [(m, i, j) for m in "qkvo" for i in range(8) for j in range(2) if (m, i, j) not in win]
    assert len(lst) == 48
    for n, key in enumerate(lst):
        res[key] = ("a", n*8) if n < 32 else ("v", 128+(n-32)*8)
_alloc()
def opnd(mname, i, j):
    if (mname, i, j) in res:
        k, b = res[(mname, i, j)]; return f"{k}[{b}:{b+7}]"
    b = win[(mname, i, j)][1]; return f"v[{b}:{b+7}]"
def win_rd(key, x):
    n, r = win[key]
    return f"ds_read_b128 {v(r+4*x,4)}, v{WL} offset:{n*2048+x*1024}"
def smf(o, d, a, b): o(f"v_smfmac_f32_16x16x64_bf16 {v(d,4)}, {v(a,4)}, {b}, v{IDX}")
def mf(o, d, a, b, c): o(f"v_mfma_f32_16x16x32_bf16 {v(d,4)}, {v(a,4)}, {v(b,4)}, {c if isinstance(c,str) else v(c,4)}")

def load_weights(o):
    STG, TMP = 16, 80
    o(f"""
    v_lshrrev_b32 v13, 5, v0
    v_bfe_u32 v14, v0, 4, 1
    v_and_b32 v15, 15, v0
    v_lshlrev_b32 v12, 18, v13
    v_lshl_add_u32 v12, v14, 16, v12
    v_lshl_add_u32 v12, v15, 2, v12
    s_lshl_b32 s60, s{S_H}, 8
    s_lshl_b32 s61, s{S_W}, 6
    s_add_u32 s60, s60, s61
    v_add_u32 v12, s60, v12
    v_lshlrev_b32 v11, 13, v13
    v_lshl_add_u32 v11, v14, 15, v11
    v_lshl_add_u32 v11, v15, 4, v11
    s_lshl_b32 s60, s{S_H}, 17
    s_lshl_b32 s61, s{S_W}, 8
    s_add_u32 s60, s60, s61
    v_add_u32 v11, s60, v11
    """)
    for j in range(4): o(f"s_xor_b32 s{84+j}, s{S_W}, {j}\ns_lshl_b32 s{84+j}, s{84+j}, 20")
    groups = [(m, i) for m in "qkv" for i in range(8)] + [("o", x) for x in range(8)]
    def issue(n):
        m, i = groups[n]; b = STG+(n%4)*16
        if m == "o":
            if i == 0: mk_srd(o, R_B, S_WO, 4096*512*2)
            for y in range(2):
                kp, jj = (2*i+y)//8, (2*i+y)%8
                for bb in range(2):
                    e = 64*kp+16*(jj//4)+4*((jj%4)//2)+2*bb+(jj%2)
                    o(f"s_mov_b32 s60, {e*1024}\nbuffer_load_dwordx4 {v(b+y*8+bb*4,4)}, v11, {srd(R_B)}, s60 offen")
            return 4
        if i == 0: mk_srd(o, R_A if m != "k" else R_B, {"q": S_WQ, "k": S_WK, "v": S_WV}[m], 512*4096*2)
        for jj in range(8):
            for bb in range(2):
                d = 4*(i%2)+64*(jj//4)+16*(jj%2)+2*((jj%4)//2)+bb
                o(f"s_add_u32 s60, s{84+i//2}, {d*8192}\nbuffer_load_dword v{b+2*jj+bb}, v12, {srd(R_A if m != 'k' else R_B)}, s60 offen")
        return 16
    cnt = {}
    AH = 3
    for n in range(AH): cnt[n] = issue(n)
    for n, (m, i) in enumerate(groups):
        o(f"s_waitcnt vmcnt({sum(cnt[x] for x in range(n+1, min(n+AH, len(groups))))})")
        b = STG+(n%4)*16
        if m == "o":
            for y in range(2):
                kp, jj = (2*i+y)//8, (2*i+y)%8
                for tl in range(8):
                    src = f"v{b+y*8+4+tl//2}, v{b+y*8+tl//2}, s{S_PL if tl%2==0 else S_PH}"
                    if ("o", tl, kp) in res:
                        k, r = res[("o", tl, kp)]; assert k == "v"
                        o(f"v_perm_b32 v{r+jj}, {src}")
                    else: o(f"v_perm_b32 v{TMP+8*(win[('o',tl,kp)][0]-10)+jj}, {src}")
        else:
            for tau in range(2):
                key = (m, i, tau)
                direct = key in res and res[key][0] == "v"
                for jj in range(8):
                    dst = res[key][1]+jj if direct else TMP+tau*8+jj
                    o(f"v_perm_b32 v{dst}, v{b+2*jj+1}, v{b+2*jj}, s{S_PL if tau==0 else S_PH}")
                if key not in res:
                    for x in range(2):
                        o(f"ds_write_b128 v{WL}, {v(TMP+tau*8+4*x,4)} offset:{win[key][0]*2048+x*1024}")
                elif not direct:
                    for jj in range(8): o(f"v_accvgpr_write_b32 a{res[key][1]+jj}, v{TMP+tau*8+jj}")
            if (m, i, 0) not in res: o("s_waitcnt lgkmcnt(0)")
        if n+AH < len(groups): cnt[n+AH] = issue(n+AH)
    for x in range(12): o(f"ds_write_b128 v{WL}, {v(TMP+4*x,4)} offset:{10*2048+x*1024}")
    o("s_waitcnt lgkmcnt(0)")

def kv_dma(o):
    o(f"s_mov_b32 m0, s{S_M0K}\ns_add_u32 s60, s{S_KV}, 8192")
    for i in range(2): o(f"buffer_load_dwordx4 v{L16}, {srd(R_WS)}, s{S_KV} offen offset:{i*1024} lds")
    o(f"s_mov_b32 m0, s{S_M0V}\ns_nop 0")
    for i in range(2): o(f"buffer_load_dwordx4 v{L16}, {srd(R_WS)}, s60 offen offset:{i*1024} lds")
def dma(o, so, i):
    if "nodma" not in X: o(f"buffer_load_dwordx4 v{L16}, {srd(R_WS)}, s{so} offen offset:{i*1024} lds")

def flag_load(o):
    o(f"v_bfe_u32 v{T1}, v{L16}, 2, 4\nbuffer_load_dword v{FLG}, v{T1}, {srd(R_WS)}, s{S_FKV} offen sc1")
def flag_check(o, code):
    L, D = o.lab("FW"), o.lab("FWD")
    o(f"v_cmp_ne_u32 vcc, 1, v{FLG}\ns_mov_b32 s61, 0\ns_nop 3\ns_cmp_eq_u32 vcc_hi, 0\ns_cbranch_scc1 {D}\n{L}:")
    flag_load(o)
    o(f"s_waitcnt vmcnt(0)\nv_cmp_ne_u32 vcc, 1, v{FLG}\ns_cbranch_vccz {D}\ns_add_u32 s61, s61, 1\ns_cmp_lt_u32 s61, {SPIN_MAX}\ns_cbranch_scc1 {L}")
    spin_fail(o, code)
    o(f"{D}:")

def pld(o, r, so):
    for i in range(2): o(f"buffer_load_dwordx4 {v(r+4*i,4)}, v{L16}, {srd(R_WS)}, s{so} offen offset:{i*1024} sc1")
def bound(o, D): o(f"s_add_u32 s61, s61, 1\ns_cmp_lt_u32 s61, {SPIN_MAX}\ns_cbranch_scc0 {D}")
def poll_ag(o, r, so, code, spec1, spec2):
    L, E, D = o.lab("PL"), o.lab("PE"), o.lab("PLD")
    o(f"s_mov_b32 s61, 0\ns_branch {E}\n{L}:")
    pld(o, r, so); bound(o, D)
    o(f"{E}:\ns_waitcnt vmcnt(3)")
    o(f"v_max3_u32 v{T0}, v{r}, v{r+1}, v{r+2}\nv_max_u32 v{T0}, v{T0}, v{r+3}")
    o(spec1); o("s_waitcnt vmcnt(2)")
    o(f"v_max3_u32 v{T0}, v{T0}, v{r+4}, v{r+5}\nv_max3_u32 v{T0}, v{T0}, v{r+6}, v{r+7}")
    o(spec2)
    o(f"v_cmp_eq_u32 vcc, -1, v{T0}\ns_cbranch_vccnz {L}")
    return D, code
def poll_rs(o, ra, rb, so, code, spec):
    L, OK, D = o.lab("PL"), o.lab("PK"), o.lab("PLD")
    o(f"s_mov_b32 s61, 0\n{L}:")
    for n, r in enumerate((ra, rb)):
        o("s_waitcnt vmcnt(3)"); o(spec(r, 0))
        o(f"v_xor_b32 v{T0}, s{S_PAR}, v{r}\ns_waitcnt vmcnt(2)"); o(spec(r, 1))
        o(f"v_xor_b32 v{T1}, s{S_PAR}, v{r+4}\nv_or_b32 v{T0}, v{T0}, v{T1}\nv_and_b32 v{T0}, 1, v{T0}\nv_cmp_ne_u32 vcc, 0, v{T0}\ns_cbranch_vccz {OK}")
        pld(o, r, so); bound(o, D)
    o(f"s_branch {L}\n{OK}:")
    return D, code

def z64(r): return f"v_mov_b64 {v(r,2)}, 0"
S_ONE = 62
PUB = X2+4
PF = X2+3
def pub_read(o):
    o(f"v_bfe_u32 v{T0}, v{L16}, 6, 3\nv_and_b32 v{T1}, 48, v{L16}\nv_mad_u32_u24 v{T0}, v{T0}, s{S_PB}, v{T1}\nv_lshrrev_b32 v{T1}, 9, v{L16}")
    o(f"v_mad_u32_u24 v{T0}, v{T1}, s{S_PC}, v{T0}\nv_add_u32 v{T0}, s{S_PA}, v{T0}\nds_read_b128 {v(PUB,4)}, v{T0}")
def pad(o, name):
    n = int(os.environ.get(name, "0"))
    while n > 0: o(f"s_nop {min(n,16)-1}"); n -= 16
def wins(o, a, b):
    for key in WINL[a:b]:
        for x in range(2): o(win_rd(key[:3], x))
def sh1(o):
    wins(o, 0, 3); pub_read(o)
def sh2(o):
    wins(o, 3, 6)
    for r in range(QA, QA+16, 2): o(z64(r))
def sh3(o):
    for r in range(VA, VA+8, 2): o(z64(r))
    for j, so in enumerate((S_O1, S_O2, S_O3)): o(f"v_add_u32 v{X2+j}, s{so}, v{WL}")
def sh4(o):
    o(f"s_sub_u32 s{S_FD}, s{S_FKV}, s{S_KV}")
    o(f"v_bfe_u32 v{T0}, v{L16}, 8, 1\nv_and_b32 v{PF}, 0xf0, v{L16}\nv_lshlrev_b32 v{T0}, 13, v{T0}\nv_lshl_add_u32 v{PF}, v{PF}, 3, v{T0}")
    o(f"s_mov_b32 exec_lo, 0\nv_bfe_u32 v{PF}, v{L16}, 2, 4\nv_add_u32 v{PF}, s{S_FD}, v{PF}\ns_mov_b32 exec_lo, -1")

NP = 9
def step_loop(o, sc, dbg):
    TOP, FIN = o.lab("RT"), o.lab("RF")
    prof = dbg == 2 and sc == ""
    def tm(i):
        if prof: o(f"s_memtime s[{84+2*i}:{85+2*i}]")
    if prof:
        for i in range(NP+2): o(f"s_mov_b32 s{40+i}, 0")
    q = []
    def ds(txt, tag=None): o(txt); q.append(tag)
    def wl(tag):
        n = len(q)-1-max(i for i, t in enumerate(q) if t == tag)
        assert n <= 15
        o(f"s_waitcnt lgkmcnt({n})")
    HM = f"s[{S_HM}:{S_HM+1}]"
    acc = {"q": QA, "k": KA, "v": VA}
    def Z(m, i, tau): smf(o, acc[m]+4*tau, MA+4*i, opnd(m, i, tau))
    fails = []
    pld(o, MA, S_AG); pld(o, MA, S_AG)
    o(f"{TOP}:")
    tm(0)
    fails.append(poll_ag(o, MA, S_AG, 4,
         f"ds_write_b128 v{WL}, {v(MA,4)} offset:{LW_M}", f"ds_write_b128 v{WL}, {v(MA+4,4)} offset:{LW_M+1024}"))
    if prof: o("s_add_u32 s49, s49, s61")
    tm(1)
    pub = f"buffer_store_dwordx4 {v(PUB,4)}, v{L16}, {srd(R_WS)}, s{S_KVM} offen sc1"
    def fkm(off): o(f"s_mov_b64 exec, 1\nbuffer_store_dword v{IDX}, off, {srd(R_WS)}, s{S_FKM} offset:{off} sc1\ns_mov_b64 exec, -1")
    for m in "qk":
        for i in range(2): Z(m,i,0); Z(m,i,1)
    o("s_waitcnt vmcnt(0) lgkmcnt(0)\ns_barrier")
    tm(2)
    mrd = lambda i: ds(f"ds_read_b128 {v(MA+4*i,4)}, v{X2+(i-2)//2} offset:{LW_M+(i%2)*1024}", f"m{i}")
    krd = lambda x: ds(f"ds_read_b128 {v(WIN+4*x,4)}, v{L16} offset:{L_K+((x%2)*4+x//2)*1024}", "K")
    mrd(2); mrd(3)
    if "nopf" not in X: o(f"buffer_load_dword v{FLG}, v{PF}, {srd(R_WS)}, s{S_KV} offen")
    Z("v",0,0); mrd(4); mrd(5); Z("v",0,1); mrd(6); mrd(7); Z("v",1,0); krd(0); krd(1); Z("v",1,1); krd(2)
    for i in range(2, 8):
        wl(f"m{i}"); Z("q",i,0)
        if i < 7: krd(i+1)
        Z("q",i,1)
        if i == 4 and "nopub" not in X: o(pub)
        if i == 6 and "nopub" not in X: fkm(0)
        if i == 2: o(f"v_mov_b64 {v(MA,2)}, s[{S_ONE}:{S_ONE+1}]")
        if i == 3: o(f"v_mov_b64 {v(MA+2,2)}, s[{S_ONE}:{S_ONE+1}]")
    add = lambda r: o(f"v_add_f32 v{r}, v{r}, v{r+2}")
    def cvt(d, x, y): o(f"v_cvt_pk_bf16_f32 v{d}, v{x}, v{y}")
    Z("k",2,0); Z("k",2,1)
    add(QA); add(QA+4); cvt(T0, QA, QA+4)
    Z("k",3,0); ds(f"ds_write_b32 v{QKW}, v{T0}", "qw")
    add(QA+1); add(QA+5); cvt(T1, QA+1, QA+5)
    Z("k",3,1); ds(f"ds_write_b32 v{QKW}, v{T1} offset:{QROW}", "qw")
    Z("k",4,0); Z("k",4,1); Z("k",5,0); Z("k",5,1)
    wl("qw"); o("s_barrier")
    tm(3)
    qrd = lambda c: ds(f"ds_read_b128 {v(XQR+4*c,4)}, v{XQ} offset:{c*64}", f"q{c}")
    qrd(0); qrd(1); Z("k",6,0); qrd(2); qrd(3); Z("k",6,1); Z("k",7,0); Z("k",7,1)
    def S(c, tl): mf(o, QA+4*tl, WIN+8*c+4*tl, XQR+4*c, "0" if c == 0 else QA+4*tl)
    vw = lambda n, x: ds(win_rd(WINL[6+n][:3], x), f"vw{n}")
    wl("q0"); S(0,0); S(0,1)
    wl("q1"); add(KA); add(KA+4)
    S(1,0); cvt(T0, KA, KA+4); add(KA+1)
    S(1,1); ds(f"ds_write_b32 v{QKW}, v{T0} offset:{KOFF}", "kw"); add(KA+5); cvt(T1, KA+1, KA+5)
    wl("q2"); S(2,0); ds(f"ds_write_b32 v{QKW}, v{T1} offset:{KOFF+QROW}", "kw"); vw(0,0); vw(0,1)
    S(2,1); wl("q3")
    S(3,0); vw(1,0); vw(1,1)
    S(3,1)
    Z("v",2,0)
    wl("kw"); o("s_barrier")
    tm(4)
    xrd = lambda c: ds(f"ds_read_b128 {v(KA+4*c,4)}, v{XK} offset:{KOFF+c*64}", f"x{c}")
    xrd(0); xrd(1); Z("v",2,1); xrd(2); xrd(3)
    o(f"v_max3_f32 v{T0}, v{QA}, v{QA+1}, v{QA+2}")
    Z("v",3,0); vw(2,0); vw(2,1)
    o(f"v_max3_f32 v{T1}, v{QA+4}, v{QA+5}, v{QA+6}\nv_max3_f32 v{T0}, v{T0}, v{QA+3}, v{QA+7}")
    Z("v",3,1); vw(3,0); vw(3,1)
    o(f"v_max_f32 v{T0}, v{T0}, v{T1}\nv_mov_b32 v{T1}, v{T0}")
    SM = MA+4
    cn = lambda i: o(f"v_cndmask_b32 v{QA+i}, v{QA+i}, v{QA+4+i}, {HM}")
    wl("x0"); mf(o, SM, KA, XQR, "0"); wl("x1")
    o(f"v_permlane16_swap_b32 v{T0}, v{T1}")
    mf(o, SM, KA+4, XQR+4, SM); wl("x2"); cn(0); o(f"v_max_f32 v{T0}, v{T0}, v{T1}")
    mf(o, SM, KA+8, XQR+8, SM); wl("x3"); cn(1); cn(2)
    mf(o, SM, KA+12, XQR+12, SM); cn(3)
    VX = KA
    Z("v",4,0)
    for tau in range(2): ds(f"ds_read_b128 {v(VX+4*tau,4)}, v{WL} offset:{LW_V+tau*1024}", "V")
    Z("v",4,1)
    ow = lambda n, x: ds(win_rd(WINL[10+n][:3], x), f"ow{n}")
    ow(0,0); ow(0,1)
    o(f"v_max3_f32 v{T0}, v{T0}, v{SM}, v{SM+1}\nv_max3_f32 v{T0}, v{T0}, v{SM+2}, v{SM+3}\nv_mov_b32 v{T1}, v{T0}")
    Z("v",5,0); ow(1,0); ow(1,1)
    o(f"v_permlane32_swap_b32 v{T0}, v{T1}")
    Z("v",5,1); wl("vw3")
    o(f"v_max_f32 v{T0}, v{T0}, v{T1}")
    fm = lambda r: o(f"v_fma_f32 v{r}, v{r}, s{S_SC}, -v{T0}")
    ex = lambda r: o(f"v_exp_f32 v{r}, v{r}")
    Z("v",6,0); o(f"v_mul_f32 v{T0}, s{S_SC}, v{T0}")
    Z("v",6,1); fm(SM)
    Z("v",7,0); ow(2,0); ow(2,1); fm(SM+1)
    Z("v",7,1); o(f"s_mov_b32 m0, s{S_M0K}")
    PB, PM, VM, OP = XQR, XQR+4, XQR+6, XQR+6
    O0, O1, OM, ZZ = MA+8, MA+12, MA+16, MA+20
    ex(SM); ex(SM+1)
    for i in range(4): fm(QA+i)
    cvt(SM, SM, SM+1)
    add(VA); add(VA+1)
    o(f"v_cndmask_b32 v{PM}, v{SM}, 0, {HM}\nv_cndmask_b32 v{PM+1}, 0, v{SM}, {HM}")
    add(VA+4); add(VA+5)
    o(f"v_mfma_f32_16x16x16_bf16 {v(ZZ,4)}, {v(MA,2)}, {v(PM,2)}, 0"); ow(3,0)
    cvt(VM, VA, VA+1); cvt(VM+1, VA+4, VA+5)
    ex(QA); ex(QA+1); ex(QA+2); cvt(T0, QA, QA+1); ex(QA+3)
    o(f"v_mfma_f32_16x16x16_bf16 {v(OM,4)}, {v(VM,2)}, {v(PM,2)}, 0"); ow(3,1)
    dp = lambda x, src, qp: o(f"v_mov_b32_dpp v{PB+x}, v{src} quad_perm:{qp} row_mask:0xf bank_mask:0xf")
    cvt(T1, QA+2, QA+3)
    dp(0, T0, "[0,1,0,1]"); dp(2, T0, "[2,3,2,3]"); dp(1, T1, "[0,1,0,1]"); dp(3, T1, "[2,3,2,3]")
    wl("V"); ds(f"ds_write_b64 v{OW}, {v(VM,2)} offset:{L_QK-L_O}"); o(f"s_cmp_eq_u32 s{S_S}, 63")
    mf(o, ZZ, MA, PB, ZZ); ow(4,0); ow(4,1); o(f"s_cbranch_scc1 {FIN}")
    mf(o, O0, VX, PB, OM); ow(5,0); ow(5,1)
    mf(o, O1, VX+4, PB, OM)
    o(f"s_nop 0\nv_rcp_f32 v{T0}, v{ZZ}")
    o(z64(MA+24)); o(z64(MA+26)); o(z64(MA+28)); o(z64(MA+30)); o("s_nop 1")
    for i in range(4): o(f"v_cndmask_b32 v{O0+i}, v{O0+i}, v{O1+i}, {HM}")
    for i in range(4): o(f"v_mul_f32 v{O0+i}, v{O0+i}, v{T0}")
    cvt(OP, O0, O0+1); cvt(OP+1, O0+2, O0+3)
    ds(f"ds_write_b64 v{OW}, {v(OP,2)}")
    tm(5)
    for r in range(MA, MA+24, 2): o(z64(r))
    o("s_waitcnt lgkmcnt(0)\ns_barrier")
    OA = QA
    for kp in range(2): ds(f"ds_read_b128 {v(OA+4*kp,4)}, v{L16} offset:{L_O+kp*1024}", f"o{kp}")
    o(f"s_add_u32 s{S_S}, s{S_S}, 1\ns_xor_b32 s{S_AG}, s{S_AG}, 8192\ns_add_u32 s{S_KVM}, s{S_KVM}, {32*KVM_SZ}")
    o(f"s_add_u32 s{S_FKM}, s{S_FKM}, 512")
    wl("o0")
    tm(6)
    PK = KA
    W = lambda tl, kp: smf(o, MA+4*tl, OA+4*kp, opnd("o", tl, kp))
    W(0,0); wl("o1"); W(0,1); W(1,0); W(1,1)
    for tl in range(2, 8):
        a = MA+4*(tl-2)
        add(a); W(tl,0)
        if tl == 6: o(f"buffer_store_dwordx4 {v(PK,4)}, v{RSR}, {srd(R_WS)}, s{S_RSW} offen{sc}")
        add(a+1); cvt(PK+tl-2, a, a+1); W(tl,1)
        if tl in (2, 6): o(f"v_and_or_b32 v{PK+tl-2}, v{PK+tl-2}, -2, s{S_PAR}")
    a = MA+24
    add(a); add(a+1); cvt(PK+6, a, a+1); o("s_nop 3")
    a = MA+28
    add(a); add(a+1); cvt(PK+7, a, a+1)
    o(f"buffer_store_dwordx4 {v(PK+4,4)}, v{RSR}, {srd(R_WS)}, s{S_RSW2} offen{sc}")
    tm(7)
    dma(o, S_KV, 0); dma(o, S_KV, 1)
    o(f"s_add_u32 s59, s{S_KV}, 8192\ns_mov_b32 m0, s{S_M0V}")
    o(f"s_add_u32 s{S_KV}, s{S_KV}, {32*16384}\ns_xor_b32 s60, s{S_AGW}, 8192\nv_mov_b32 v{MA}, -1")
    RB, RD, RC = MA+8, MA+16, MA+24
    sh1(o); pad(o, "P1"); pld(o, RB, S_RSR)
    sh2(o); pad(o, "P2"); pld(o, RC, S_RSR)
    mtxt = lambda r, i: f"v_mfma_f32_16x16x32_bf16 {v(RD,4)}, {v(SEL,4)}, {v(r+4*i,4)}, {v(RD,4) if i else 0}"
    fails.append(poll_rs(o, RB, RC, S_RSR, 16, mtxt))
    if prof: o("s_add_u32 s50, s50, s61")
    tm(8)
    o("s_nop 3")
    for sh in (4, 8):
        for i in range(2): o(f"v_add_f32_dpp v{RD+i}, v{RD+i}, v{RD+i} row_ror:{sh} row_mask:0xf bank_mask:0xf")
        if sh == 4: o("s_nop 0")
    o(f"v_cvt_pk_bf16_f32 v{RD}, v{RD}, v{RD+1}")
    o(f"buffer_store_dword v{RD}, v{AGW}, {srd(R_WS)}, s60 offen{sc}")
    o(f"buffer_store_dword v{MA}, v{AGW}, {srd(R_WS)}, s{S_AGW} offen{sc}\ns_mov_b32 s{S_AGW}, s60\ns_xor_b32 s{S_PAR}, s{S_PAR}, 1")
    dma(o, 59, 0); dma(o, 59, 1)
    flag_check(o, 8)
    o(f"s_add_u32 s{S_FKV}, s{S_FKV}, 512\ns_min_u32 s{S_FKV}, s{S_FKV}, s83")
    sh3(o); pad(o, "P3"); pld(o, MA, S_AG)
    sh4(o); pad(o, "P4"); pld(o, MA, S_AG)
    o("s_waitcnt lgkmcnt(0)")
    if prof:
        o("s_memtime s[6:7]\ns_waitcnt lgkmcnt(0)")
        for i in range(NP):
            o(f"s_sub_u32 s5, s{84+2*i+2 if i < NP-1 else 6}, s{84+2*i}\ns_add_u32 s{40+i}, s{40+i}, s5")
        tr = int(os.environ.get("TR", "-1"))
        o("s_mov_b32 s5, s84" if tr < 0 else f"s_sub_u32 s5, s{84+2*tr+2 if tr < NP-1 else 6}, s{84+2*tr}")
        o(f"s_lshl_b32 s7, s{S_W}, 6\ns_add_u32 s7, s7, s{S_S}\ns_lshl_b32 s7, s7, 2\ns_add_u32 s7, s7, {L_QK+4608}\nv_mov_b32 v{T0}, s7\nv_mov_b32 v{T1}, s5\nds_write_b32 v{T0}, v{T1}")
    o(f"s_branch {TOP}")
    for lab, code in fails:
        o(f"{lab}:"); spin_fail(o, code)
    o(f"{FIN}:\ns_waitcnt lgkmcnt(0)\ns_barrier\ns_add_u32 s{S_KVM}, s{S_KVM}, {32*KVM_SZ}")
    pub_read(o)
    o(f"s_waitcnt lgkmcnt(0)\n{pub}\ns_waitcnt vmcnt(0)")
    fkm(512); fkm(1024)

def recurrence(o, dbg):
    o(f"s_mov_b32 s{S_H}, s{S_ROLE}\ns_barrier")
    o(f"""
    v_lshlrev_b32 v{L16}, 4, v0
    v_lshrrev_b32 v20, 4, v0
    v_and_b32 v21, 15, v0
    v_bfe_u32 v22, v0, 1, 1
    v_cmp_eq_u32 s[{S_HM}:{S_HM+1}], 1, v22
    v_mov_b32 v23, 0x4444
    v_mov_b32 v24, 0xeeee
    s_mul_i32 s60, s{S_W}, {L_STR}
    v_cndmask_b32 v{IDX}, v23, v24, s[{S_HM}:{S_HM+1}]
    s_add_u32 s60, s60, {L_WV0}
    v_add_u32 v{WL}, s60, v{L16}
    s_add_u32 s{S_M0V}, s60, {LW_V}
    s_lshl_b32 s{S_M0K}, s{S_W}, 11
    v_mul_u32_u24 v23, {2*QROW}, v20
    v_lshl_add_u32 v23, v21, 2, v23
    s_lshl_b32 s61, s{S_W}, 6
    s_add_u32 s61, s61, {L_QK}
    v_add_u32 v{QKW}, s61, v23
    v_lshrrev_b32 v23, 2, v21
    v_and_b32 v24, 1, v0
    v_lshl_add_u32 v25, v23, 1, v24
    v_mul_u32_u24 v25, {QROW}, v25
    v_lshl_add_u32 v25, v20, 4, v25
    v_add_u32 v{XQ}, {L_QK}, v25
    v_xor_b32 v23, v23, v22
    v_lshl_add_u32 v25, v23, 1, v24
    v_mul_u32_u24 v25, {QROW}, v25
    v_lshl_add_u32 v25, v20, 4, v25
    v_add_u32 v{XK}, {L_QK}, v25
    s_lshr_b32 s61, s{S_W}, 1
    s_lshl_b32 s61, s61, 10
    s_and_b32 s62, s{S_W}, 1
    s_lshl_b32 s62, s62, 3
    s_add_u32 s61, s61, s62
    s_add_u32 s61, s61, {L_O}
    v_add_u32 v{OW}, s61, v{L16}
    v_lshrrev_b32 v23, 2, v0
    v_lshlrev_b32 v23, 11, v23
    v_and_b32 v24, 3, v0
    v_lshl_add_u32 v{RSR}, v24, 4, v23
    """)
    for j, so in enumerate((S_O1, S_O2, S_O3)):
        o(f"s_xor_b32 s61, s{S_W}, {j+1}\ns_sub_i32 s61, s61, s{S_W}\ns_mul_i32 s{so}, s61, {L_STR}")
    o(f"""
    v_lshrrev_b32 v23, 1, v20
    v_and_b32 v25, 1, v20
    v_and_b32 v26, 2, v0
    v_add_u32 v26, v26, v23
    v_lshlrev_b32 v26, 4, v26
    v_and_b32 v27, 1, v0
    v_lshl_add_u32 v26, v27, 3, v26
    v_lshl_add_u32 v26, v25, 2, v26
    v_cmp_gt_u32 vcc, 4, v21
    v_mov_b32 v27, 0x40000000
    s_nop 0
    v_cndmask_b32 v{AGW}, v27, v26, vcc
    """)
    o(f"""
    s_lshl_b32 s60, s{S_H}, 2
    s_add_u32 s60, s60, s{S_W}
    s_lshl_b32 s61, s60, 11
    s_add_u32 s{S_RSR}, s61, {RS}
    s_lshr_b32 s61, s60, 4
    s_bfe_u32 s62, s60, 0x20002
    s_and_b32 s63, s60, 3
    s_lshl_b32 s{S_AGW}, s61, 10
    s_lshl_b32 s58, s63, 8
    s_add_u32 s{S_AGW}, s{S_AGW}, s58
    s_lshl_b32 s58, s62, 6
    s_add_u32 s{S_AGW}, s{S_AGW}, s58
    s_add_u32 s{S_AGW}, s{S_AGW}, {AG}
    s_lshr_b32 s58, s61, 1
    s_lshl_b32 s58, s58, 8
    s_and_b32 s61, s61, 1
    s_lshl_b32 s61, s61, 3
    s_add_u32 s58, s58, s61
    s_lshl_b32 s63, s63, 6
    s_add_u32 s58, s58, s63
    s_lshl_b32 s62, s62, 11
    s_add_u32 s58, s58, s62
    v_lshlrev_b32 v26, 10, v23
    v_lshl_add_u32 v26, v24, 4, v26
    v_lshl_add_u32 v26, v25, 2, v26
    """)
    mk_srd(o, R_A, S_MEM0, 8192)
    o(f"buffer_load_dword v28, v26, {srd(R_A)}, s58 offen")
    for i in range(4): o(f"v_mov_b32 v{32+i}, -1")
    for i in range(2): o(f"buffer_store_dwordx4 v[32:35], v{L16}, {srd(R_WS)}, s{S_RSR} offen offset:{i*1024} sc1")
    o(f"s_xor_b32 s60, s{S_AGW}, 8192\nbuffer_store_dword v32, v{AGW}, {srd(R_WS)}, s60 offen sc1")
    o(f"s_waitcnt vmcnt(3)\nv_min_u32 v28, -2, v28\nbuffer_store_dword v28, v{AGW}, {srd(R_WS)}, s{S_AGW} offen sc1")
    arrive_dbg(o, D_REC, 30, 31)
    load_weights(o)
    stamp(o, 1, False)
    o(f"""
    v_and_b32 v21, 15, v0
    v_lshrrev_b32 v23, 3, v21
    v_lshlrev_b32 v23, 4, v23
    v_mov_b32 v24, 0x3f80
    v_lshlrev_b32 v24, v23, v24
    v_and_b32 v25, 7, v21
    """)
    for dw, pat in enumerate((0, 1, 4, 5)):
        o(f"v_cmp_eq_u32 vcc, {pat}, v25\ns_nop 1\nv_cndmask_b32 v{SEL+dw}, 0, v24, vcc")
    o(f"""
    s_mov_b32 s{S_S}, 0
    s_mov_b32 s{S_SC}, {fbits(128**-0.5*math.log2(math.e))}
    s_lshl_b32 s60, s{S_W}, 11
    s_add_u32 s{S_AG}, s60, {AG}
    s_lshl_b32 s61, s{S_H}, 6
    s_lshl_b32 s62, s{S_W}, 16
    s_add_u32 s61, s61, s62
    s_add_u32 s{S_RSW}, s61, {RS}
    s_add_u32 s{S_RSW2}, s61, {RS+32768}
    s_mov_b32 s{S_PAR}, 0
    s_lshl_b32 s61, s{S_W}, 7
    s_add_u32 s61, s61, {L_QK+KOFF}
    s_lshl_b32 s62, s{S_W}, 10
    s_add_u32 s62, s62, {L_QK-2048}
    s_cmp_lt_u32 s{S_W}, 2
    s_cselect_b32 s{S_PA}, s61, s62
    s_cselect_b32 s{S_PB}, {QROW}, 64
    s_cselect_b32 s{S_PC}, 64, 512
    s_lshl_b32 s61, s{S_H}, 14
    s_add_u32 s61, s61, s60
    s_add_u32 s{S_KV}, s61, {KV}
    s_mul_i32 s61, s{S_H}, {KVM_SZ}
    s_lshl_b32 s62, s{S_W}, 10
    s_add_u32 s61, s61, s62
    s_add_u32 s{S_KVM}, s61, {KVM-32*KVM_SZ}
    s_lshl_b32 s61, s{S_H}, 4
    s_add_u32 s{S_FKV}, s61, {FL_KV}
    s_add_u32 s83, s61, {FL_KV+63*512}
    s_lshl_b32 s62, s{S_W}, 2
    s_add_u32 s61, s61, s62
    s_add_u32 s{S_FKM}, s61, {FL_KVM-1024}
    """)
    wait_dbg(o, D_ARR, 256, 20, 21, 32)
    wait_dbg(o, D_REC, 32, 20, 21, 64)
    o(f"v_mov_b32 v21, 0\nglobal_load_dword v20, v21, s[{S_DBG}:{S_DBG+1}] sc1")
    flag_load(o); o("s_waitcnt vmcnt(0)"); flag_check(o, 128)
    kv_dma(o)
    o(f"s_add_u32 s{S_KV}, s{S_KV}, {32*16384}\ns_add_u32 s{S_FKV}, s{S_FKV}, 512")
    flag_load(o); o("s_waitcnt vmcnt(0)"); flag_check(o, 128)
    o(f"s_add_u32 s{S_FKV}, s{S_FKV}, 512")
    sh1(o); sh2(o); sh3(o); sh4(o)
    o(f"v_readfirstlane_b32 s60, v20\ns_waitcnt lgkmcnt(0)\ns_cmp_lt_u32 s60, 32\ns_cbranch_scc1 REC_SLOW")
    if dbg: rstamp(o, 1)
    o(f"s_mov_b32 s{S_ONE}, 0x3f803f80\ns_mov_b32 s{S_ONE+1}, 0x3f803f80")
    step_loop(o, "", dbg)
    if dbg:
        rstamp(o, 2)
        for i in range(NP+2): o(f"v_mov_b32 v{T0}, s{40+i}\nbuffer_store_dword v{T0}, v{T1}, {srd(R_WS)}, s62 offen offset:{(8-2+i)*4}")
        o(f"s_lshl_b32 s7, s{S_W}, 8\nv_lshrrev_b32 v{T1}, 2, v{L16}\nv_add_u32 v{T0}, s7, v{T1}\nds_read_b32 v{T0}, v{T0} offset:{L_QK+4608}")
        o(f"s_lshl_b32 s62, s{S_H}, 10\ns_add_u32 s62, s62, s7\ns_add_u32 s62, s62, {TS+262144}\ns_waitcnt lgkmcnt(0)\nbuffer_store_dword v{T0}, v{T1}, {srd(R_WS)}, s62 offen")
    o("s_waitcnt vmcnt(0)\ns_endpgm\nREC_SLOW:")
    o(f"s_mov_b32 s{S_ONE}, 0x3f803f80\ns_mov_b32 s{S_ONE+1}, 0x3f803f80")
    step_loop(o, " sc1", dbg)

def rstamp(o, slot):
    o(f"s_memrealtime s[62:63]\ns_waitcnt lgkmcnt(0)\nv_mov_b32 v{T0}, s62")
    o(f"s_lshl_b32 s62, s{S_ROLE}, 2\ns_add_u32 s62, s62, s{S_W}\ns_lshl_b32 s62, s62, 7\ns_add_u32 s62, s62, {TS+slot*4}")
    o(f"v_mov_b32 v{T1}, 0\nbuffer_store_dword v{T0}, v{T1}, {srd(R_WS)}, s62 offen")
```

```python
from common import *
V_OA, V_OB = 2, 3
STG = 128
def load_weights(o, rs, nt=16, dst=None):
    groups = [(m, t) for m in range(2) for t in range(nt)]
    AHEAD = 7
    def issue(i):
        m, t = groups[i]
        for j in range(8):
            o(f"s_mov_b32 s60, {(32*t+j)*rs}")
            o(f"buffer_load_dword v{STG+(i%8)*8+j}, v{V_OA+m}, {srd(R_A if m==0 else R_B)}, s60 offen")
    for i in range(min(AHEAD, len(groups))): issue(i)
    for i, (m, t) in enumerate(groups):
        rem = min(AHEAD-1, len(groups)-1-i)
        o(f"s_waitcnt vmcnt({rem*8})")
        b = STG+(i%8)*8
        for jj in range(4):
            o(f"v_perm_b32 v{4+jj}, v{b+2*jj+1}, v{b+2*jj}, s{S_PL}")
            o(f"v_perm_b32 v{8+jj}, v{b+2*jj+1}, v{b+2*jj}, s{S_PH}")
        for jj in range(4):
            o(f"v_accvgpr_write_b32 a{((2*m)*nt+t)*4+jj}, v{4+jj}")
            o(f"v_accvgpr_write_b32 a{((2*m+1)*nt+t)*4+jj}, v{8+jj}")
        if i+AHEAD < len(groups): issue(i+AHEAD)

ACC = 32
XB = 64
V_L16, V_LRD = 12, 13
S_SEG, S_R7, S_BUF, S_BLK, S_PREV = 64, 65, 66, 67, 68

def dma_seg(o, sseg, sbuf):
    o(f"s_lshl_b32 s60, s{sseg}, 15\ns_lshl_b32 s61, s{S_W}, 13\ns_add_u32 s60, s60, s61\ns_add_u32 s61, s61, s{sbuf}")
    for h in range(2):
        o(f"s_mov_b32 m0, s61\ns_nop 0")
        for i in range(4):
            o(f"buffer_load_dwordx4 v{V_L16}, {srd(R_WS)}, s60 offen offset:{i*1024} lds")
        if h == 0: o("s_add_u32 s60, s60, 4096\ns_add_u32 s61, s61, 4096")

def gelu_mul(o, g, u, t0, t1):
    o(f"v_mul_f32 v{t0}, v{g}, v{g}")
    o(f"v_fma_f32 v{t0}, v{t0}, s70, v14")
    o(f"v_mul_f32 v{t0}, v{t0}, v{g}")
    o(f"v_exp_f32 v{t0}, v{t0}\ns_nop 0")
    o(f"v_add_f32 v{t0}, 1.0, v{t0}")
    o(f"v_rcp_f32 v{t0}, v{t0}\ns_nop 0")
    o(f"v_mul_f32 v{g}, v{g}, v{t0}")

def gemm_loop(o, kind):
    L, E, NOD, NOF = o.lab("G"), o.lab("GE"), o.lab("GN"), o.lab("GF")
    o(f"v_lshlrev_b32 v{V_L16}, 4, v0\ns_mov_b32 s{S_BUF}, 0\ns_mov_b32 s{S_PREV}, -1")
    if kind == "GU":
        import math
        c0 = -2*math.sqrt(2/math.pi)*math.log2(math.e); c1 = c0*0.044715
        import struct
        f = lambda x: hex(struct.unpack("<I", struct.pack("<f", x))[0])
        o(f"s_mov_b32 s70, {f(c1)}\nv_mov_b32 v14, {f(c0)}")
    dma_seg(o, S_SEG, S_BUF)
    o("s_waitcnt vmcnt(0)")
    o(f"{L}:\ns_barrier")
    o(f"v_add_u32 v{V_LRD}, s{S_BUF}, v{V_L16}")
    def rd(t):
        for tt in range(2):
            o(f"ds_read_b128 v[{XB+(t%4)*8+tt*4}:{XB+(t%4)*8+tt*4+3}], v{V_LRD} offset:{tt*16384+t*1024}")
    for t in range(3): rd(t)
    o(f"s_add_u32 s69, s{S_SEG}, 7\ns_xor_b32 s{S_BUF}, s{S_BUF}, 32768\ns_cmp_ge_u32 s69, 64\ns_cbranch_scc1 {NOD}")
    dma_seg(o, 69, S_BUF)
    o(f"{NOD}:")
    for t in range(16):
        if t+3 < 16: rd(t+3)
        o(f"s_waitcnt lgkmcnt({2*min(3, 15-t)})")
        for tile in range(4):
            for tt in range(2):
                d = v(ACC+(tt*4+tile)*4, 4); w = a_((tile*16+t)*4, 4); x = v(XB+(t%4)*8+tt*4, 4)
                c = "0" if t == 0 else d
                if kind == "KV" and tile >= 2: o(f"v_mfma_f32_16x16x32_bf16 {d}, {x}, {w}, {c}")
                else: o(f"v_mfma_f32_16x16x32_bf16 {d}, {w}, {x}, {c}")
    o("s_waitcnt vmcnt(0)")
    if kind == "KV":
        o(f"s_cmp_lt_i32 s{S_PREV}, 0\ns_cbranch_scc1 {NOF}")
        kv_flag(o, S_PREV)
        o(f"{NOF}:")
    o("s_nop 7")
    A = lambda tt, tile, i: ACC+(tt*4+tile)*4+i
    P = 96
    if kind in ("KV", "QQ"):
        if kind == "KV":
            o(f"s_lshl_b32 s60, s{S_SEG}, 5\ns_add_u32 s60, s60, s{S_BLK}\ns_lshl_b32 s60, s60, 14\ns_add_u32 s60, s60, {KV}")
        else:
            o(f"s_lshl_b32 s60, s{S_SEG}, 4\ns_add_u32 s60, s60, s{S_BLK}\ns_lshl_b32 s60, s60, 14\ns_add_u32 s60, s60, {QX}")
        o(f"s_lshl_b32 s61, s{S_W}, 10\ns_add_u32 s61, s60, s61")
        for tt in range(2):
            for i in range(4): o(f"v_cvt_pk_bf16_f32 v{P+tt*4+i}, v{A(tt,0,i)}, v{A(tt,1,i)}")
            o(f"buffer_store_dwordx4 {v(P+tt*4,4)}, v{V_L16}, {srd(R_WS)}, s61 offen sc1")
            o("s_add_u32 s61, s61, 4096")
        if kind == "QQ":
            for tt in range(2):
                for i in range(4): o(f"v_cvt_pk_bf16_f32 v{P+8+tt*4+i}, v{A(tt,2,i)}, v{A(tt,3,i)}")
                o(f"buffer_store_dwordx4 {v(P+8+tt*4,4)}, v{V_L16}, {srd(R_WS)}, s61 offen sc1")
                o("s_add_u32 s61, s61, 4096")
        else:
            o(f"s_lshl_b32 s61, s{S_W}, 11\ns_add_u32 s61, s60, s61\ns_add_u32 s61, s61, 8192")
            for tau in range(2):
                for tt in range(2):
                    for i in range(2): o(f"v_cvt_pk_bf16_f32 v{P+8+tau*4+tt*2+i}, v{A(tt,2+tau,2*i)}, v{A(tt,2+tau,2*i+1)}")
                o(f"buffer_store_dwordx4 {v(P+8+tau*4,4)}, v{V_L16}, {srd(R_WS)}, s61 offen offset:{tau*1024} sc1")
    else:
        o(f"s_mul_i32 s60, s{S_SEG}, {2*56*1024}\ns_lshl_b32 s61, s{S_BLK}, 2\ns_add_u32 s61, s61, s{S_W}\ns_lshl_b32 s61, s61, 10")
        o(f"s_add_u32 s60, s60, s61\ns_add_u32 s60, s60, {HH}")
        for tt in range(2):
            for i in range(4):
                g0, g1, u0, u1 = A(tt,0,i), A(tt,1,i), A(tt,2,i), A(tt,3,i)
                def rnd2(x, y): o(f"v_cvt_pk_bf16_f32 v15, v{x}, v{y}\nv_lshlrev_b32 v{x}, 16, v15\nv_and_b32 v{y}, 0xffff0000, v15")
                rnd2(g0, g1); rnd2(u0, u1)
                gelu_mul(o, g0, u0, 16, 17); gelu_mul(o, g1, u1, 16, 17)
                rnd2(g0, g1)
                o(f"v_mul_f32 v{g0}, v{g0}, v{u0}\nv_mul_f32 v{g1}, v{g1}, v{u1}\nv_cvt_pk_bf16_f32 v{P+tt*4+i}, v{g0}, v{g1}")
            o(f"buffer_store_dwordx4 {v(P+tt*4,4)}, v{V_L16}, {srd(R_WS)}, s60 offen sc1")
            o(f"s_add_u32 s60, s60, {56*1024}")
    o(f"s_mov_b32 s{S_PREV}, s{S_SEG}\ns_add_u32 s{S_SEG}, s{S_SEG}, 7\ns_cmp_lt_u32 s{S_SEG}, 64\ns_cbranch_scc1 {L}")
    if kind == "KV":
        o("s_waitcnt vmcnt(0)")
        kv_flag(o, S_PREV)

def kv_flag(o, sseg):
    o(f"s_lshl_b32 s60, s{sseg}, 5\ns_add_u32 s60, s60, s{S_BLK}\ns_lshl_b32 s60, s60, 2\ns_add_u32 s60, s60, s{S_W}\ns_lshl_b32 s60, s60, 2\ns_add_u32 s60, s60, {FL_KV}")
    o(f"v_mov_b32 v15, 1\nv_mov_b32 v16, 0\ns_mov_b64 exec, 1\nbuffer_store_dword v15, v16, {srd(R_WS)}, s60 offen sc1\ns_mov_b64 exec, -1")

def woff(o, rs, sa, sb):
    o(f"v_lshrrev_b32 v4, 4, v0\nv_and_b32 v5, 15, v0\nv_mul_u32_u24 v4, {8*rs}, v4\nv_lshl_add_u32 v4, v5, 2, v4")
    o(f"v_add_u32 v{V_OA}, s{sa}, v4\nv_add_u32 v{V_OB}, s{sb}, v4")

def workers12(o, dbg):
    o(f"s_sub_u32 s71, s{S_ROLE}, 32\ns_mul_i32 s{S_BLK}, s71, 9363\ns_lshr_b32 s{S_BLK}, s{S_BLK}, 16\ns_mul_i32 s60, s{S_BLK}, 7\ns_sub_u32 s{S_R7}, s71, s60")
    import phase3
    phase3.arm_kvm(o)
    mk_srd(o, R_A, S_WK, 512*4096*2); mk_srd(o, R_B, S_WV, 512*4096*2)
    o(f"s_lshl_b32 s60, s{S_BLK}, 8\ns_lshl_b32 s61, s{S_W}, 6\ns_add_u32 s61, s60, s61")
    woff(o, 8192, 61, 61)
    load_weights(o, 8192)
    stamp(o, 1, dbg)
    arrive_dbg(o, D_REC, 4, 5)
    wait_dbg(o, D_ARR, 256, 4, 5, 2)
    stamp(o, 2, dbg)
    o(f"s_mov_b32 s{S_SEG}, s{S_R7}")
    gemm_loop(o, "KV")
    stamp(o, 3, dbg)
    o(f"s_mov_b32 s{S_SEG}, s{S_R7}\ns_cmp_ge_u32 s{S_BLK}, 30\ns_cbranch_scc1 P2_DONE\ns_cmp_ge_u32 s{S_BLK}, 16\ns_cbranch_scc1 P2_GU")
    mk_srd(o, R_A, S_WQ, 512*4096*2); mk_srd(o, R_B, S_WQ, 512*4096*2)
    o(f"s_lshl_b32 s60, s{S_BLK}, 9\ns_lshl_b32 s61, s{S_W}, 6\ns_add_u32 s61, s60, s61\ns_add_u32 s62, s61, 256")
    woff(o, 8192, 61, 62)
    load_weights(o, 8192)
    o("s_barrier")
    gemm_loop(o, "QQ")
    o("s_branch P2_DONE\nP2_GU:")
    mk_srd(o, R_A, S_GATE, 512*1792*2); mk_srd(o, R_B, S_UP, 512*1792*2)
    o(f"s_sub_u32 s{S_BLK}, s{S_BLK}, 16\ns_lshl_b32 s60, s{S_BLK}, 8\ns_lshl_b32 s61, s{S_W}, 6\ns_add_u32 s61, s60, s61")
    woff(o, 3584, 61, 61)
    load_weights(o, 3584)
    o("s_barrier")
    gemm_loop(o, "GU")
    o("P2_DONE:")
    phase3.arm_first(o)
    arrive_dbg(o, D_P2, 4, 5)
    stamp(o, 4, dbg)
```

```python
from common import *
import math, struct
fbits = lambda x: hex(struct.unpack("<I", struct.pack("<f", x))[0])
L16, KMO, MSK, OUTO, T0, T1, FO, XR = 1, 2, 3, 4, 5, 6, 7, 8
LRD = 9
Z0 = 10
BUF = 16
ACC = 128
WD = 144
S_J, S_U, S_HD, S_EH, S_PAR, S_SC, S_QT = 64, 65, 66, 67, 68, 69, 70
def mf(o, d, a, b, c): o(f"v_mfma_f32_16x16x32_bf16 {v(d,4)}, {a}, {v(b,4)}, {c if isinstance(c,str) else v(c,4)}")

def load_w(o):
    STG = 16
    o(f"v_lshrrev_b32 v4, 4, v0\nv_and_b32 v5, 15, v0\nv_lshlrev_b32 v4, 13, v4\nv_lshl_add_u32 v4, v5, 2, v4")
    o(f"s_lshl_b32 s60, s{S_J}, 6\ns_lshl_b32 s61, s{S_W}, 20\ns_add_u32 s61, s61, s60\nv_add_u32 v2, s61, v4")
    o(f"s_mul_i32 s61, s{S_W}, {448*1024}\ns_add_u32 s61, s61, s60\nv_add_u32 v3, s61, v4")
    mk_srd(o, R_A, S_WO, 4096*512*2); mk_srd(o, R_B, S_DOWN, 1792*512*2)
    groups = [(1, t) for t in range(14)] + [(0, t) for t in range(32)]
    AHEAD = 7
    def issue(i):
        m, t = groups[i]
        for jq in range(2):
            o(f"s_mov_b32 s60, {(32*t+4*jq)*1024}")
            for j in range(4):
                o(f"buffer_load_dword v{STG+(i%8)*8+4*jq+j}, v{2+m}, {srd(R_A if m==0 else R_B)}, s60 offen offset:{j*1024}")
    for i in range(AHEAD): issue(i)
    for i, (m, t) in enumerate(groups):
        rem = min(AHEAD-1, len(groups)-1-i)
        o(f"s_waitcnt vmcnt({rem*8})")
        b = STG+(i%8)*8
        for tau in range(2):
            for jj in range(4):
                d = WD+(t*2+tau)*4+jj if m == 1 else 4+tau*4+jj
                o(f"v_perm_b32 v{d}, v{b+2*jj+1}, v{b+2*jj}, s{S_PL if tau==0 else S_PH}")
        if m == 0:
            for x in range(8): o(f"v_accvgpr_write_b32 a{t*8+x}, v{4+x}")
        if i+AHEAD < len(groups): issue(i+AHEAD)

def spin(o, sreg, code):
    L, D = o.lab("SP"), o.lab("SPD")
    o(f"s_mov_b32 s61, 0\n{L}:\nbuffer_load_dword v{T0}, v{T1}, {srd(R_WS)}, s{sreg} offen sc1\ns_add_u32 s61, s61, 1\ns_waitcnt vmcnt(0)")
    o(f"v_cmp_eq_u32 vcc, 0, v{T0}\ns_cbranch_vccz {D}\ns_cmp_lt_u32 s61, {SPIN_MAX}\ns_cbranch_scc1 {L}")
    spin_fail(o, code)
    o(f"{D}:")

def xl(o, op, r, t):
    for sw in ("v_permlane16_swap_b32", "v_permlane32_swap_b32"):
        o(f"v_mov_b32 v{t}, v{r}\ns_nop 1\n{sw} v{r}, v{t}\ns_nop 1\n{op} v{r}, v{r}, v{t}")


S_FAST, S_SL, S_LB, S_OB, S_KM = 71, 72, 73, 74, 75
LH, LQ, LK, LV, LWV, LRED = 0, 14336, 18432, 26624, 30720, 122880
LA, DUM = 14, 15
OSL = 131072
def arm_first(o):
    o(f"s_sub_u32 s60, s{S_ROLE}, 32\ns_lshr_b32 s61, s60, 4\ns_mul_i32 s61, s61, {3*OSL}\ns_and_b32 s60, s60, 15\ns_lshl_b32 s60, s60, 13")
    o(f"s_add_u32 s60, s60, s61\ns_lshl_b32 s61, s{S_W}, 11\ns_add_u32 s60, s60, s61\ns_add_u32 s60, s60, {OO}\ns_add_u32 s61, s60, {OSL}")
    o("v_lshlrev_b32 v8, 4, v0")
    for i in range(4): o(f"v_mov_b32 v{4+i}, -1")
    for s in (60, 61):
        for c in range(2): o(f"buffer_store_dwordx4 v[4:7], v8, {srd(R_WS)}, s{s} offen offset:{c*1024} sc1")
def arm_kvm(o):
    L = o.lab("AK")
    o(f"s_sub_u32 s60, s{S_ROLE}, 32\ns_lshl_b32 s60, s60, 2\ns_add_u32 s60, s60, s{S_W}\ns_lshl_b32 s60, s60, 10\ns_add_u32 s60, s60, {KVM}")
    o("v_lshlrev_b32 v8, 4, v0")
    for i in range(4): o(f"v_mov_b32 v{4+i}, -1")
    o(f"{L}:\nbuffer_store_dwordx4 v[4:7], v8, {srd(R_WS)}, s60 offen sc1\ns_add_u32 s60, s60, {224*KVM_SZ}\ns_cmp_lt_u32 s60, {KVM+2048*KVM_SZ}\ns_cbranch_scc1 {L}")

def addrs(o, su):
    o(f"s_lshr_b32 s62, s{su}, 1\ns_lshl_b32 s62, s62, 5\ns_add_u32 s62, s62, s{S_HD}")
    o(f"s_mul_i32 s60, s{su}, {56*1024}\ns_mul_i32 s61, s{S_W}, {14*1024}\ns_add_u32 s60, s60, s61\ns_add_u32 s60, s60, {HH}")
    o(f"s_and_b32 s61, s{su}, 1\ns_lshl_b32 s59, s62, 1\ns_add_u32 s59, s59, s61\ns_lshl_b32 s59, s59, 12\ns_add_u32 s59, s59, {QX}")
    o(f"s_lshl_b32 s63, s62, 14\ns_add_u32 s63, s63, {KV}")
def stage(o):
    addrs(o, S_U)
    def blk(so, lds, n):
        o(f"s_add_u32 m0, s{S_LB}, {lds}\ns_nop 0")
        for i in range(n): o(f"buffer_load_dwordx4 v{L16}, {srd(R_WS)}, s{so} offen offset:{i*1024} lds")
    blk(59, LQ, 4); blk(63, LK, 4)
    o("s_add_u32 s59, s63, 4096"); blk(59, LK+4096, 4)
    o(f"s_lshl_b32 s59, s{S_EH}, 12\ns_add_u32 s59, s59, s63\ns_add_u32 s59, s59, 8192"); blk(59, LV, 4)
    for q in range(4):
        blk(60, LH+q*4096, 4 if q < 3 else 2)
        if q < 3: o("s_add_u32 s60, s60, 4096")
def st2(o, r, so, step):
    A, B = o.lab("SA"), o.lab("SB")
    o(f"s_cmp_eq_u32 s{S_FAST}, 0\ns_cbranch_scc1 {A}")
    for c in range(2): o(f"buffer_store_dwordx4 {v(r+step*c,4)}, v{L16}, {srd(R_WS)}, s{so} offen offset:{c*1024}")
    o(f"s_branch {B}\n{A}:")
    for c in range(2): o(f"buffer_store_dwordx4 {v(r+step*c,4)}, v{L16}, {srd(R_WS)}, s{so} offen offset:{c*1024} sc1")
    o(f"{B}:")

def workers3(o, dbg):
    o(f"s_sub_u32 s60, s{S_ROLE}, 32\ns_and_b32 s{S_J}, s60, 15\ns_lshr_b32 s{S_U}, s60, 4")
    load_w(o)
    stamp(o, 5, False)
    o(f"""
    v_lshlrev_b32 v{L16}, 4, v0
    v_lshrrev_b32 v20, 4, v0
    v_and_b32 v21, 15, v0
    v_lshrrev_b32 v22, 2, v21
    v_and_b32 v23, 1, v0
    v_lshl_add_u32 v22, v22, 1, v23
    v_lshlrev_b32 v22, 6, v22
    v_lshl_add_u32 v{KMO}, v20, 4, v22
    v_lshlrev_b32 v22, 2, v20
    v_sub_u32 v{MSK}, v22, v21
    v_lshlrev_b32 v22, 10, v21
    v_lshl_add_u32 v22, v20, 4, v22
    s_lshl_b32 s60, s{S_J}, 6
    s_lshl_b32 s61, s{S_W}, 2
    s_add_u32 s60, s60, s61
    v_add_u32 v{OUTO}, s60, v22
    v_lshlrev_b32 v{FO}, 7, v0
    s_add_u32 s61, s61, {LRED}
    v_add_u32 v{LRD}, s61, v{L16}
    v_mov_b32 v{Z0+1}, 0
    v_mov_b32 v{Z0+2}, 0
    s_lshr_b32 s60, s{S_W}, 1
    s_lshl_b32 s{S_HD}, s{S_J}, 1
    s_add_u32 s{S_HD}, s{S_HD}, s60
    s_and_b32 s{S_EH}, s{S_W}, 1
    s_mov_b32 s{S_PAR}, 0
    s_mov_b32 s{S_SC}, {fbits(128**-0.5*math.log2(math.e))}
    s_mul_i32 s{S_LB}, s{S_W}, {LWV}
    v_add_u32 v{LA}, s{S_LB}, v{L16}
    s_mul_i32 s{S_OB}, s{S_U}, {3*OSL}
    s_add_u32 s{S_OB}, s{S_OB}, {OO}
    s_mov_b32 s{S_SL}, 0
    s_lshr_b32 s60, s{S_ROLE}, 5
    s_lshl_b32 s60, s60, 2
    v_mov_b32 v21, s60
    global_load_dword v20, v21, s[{S_DBG}:{S_DBG+1}] sc1
    s_and_b32 s60, s{S_ROLE}, 16
    s_add_u32 s60, s60, 16
    s_waitcnt vmcnt(0)
    v_readfirstlane_b32 s61, v20
    s_cmp_ge_u32 s61, s60
    s_cselect_b32 s{S_FAST}, 1, 0
    """)
    wait_dbg(o, D_P2, 224, T0, T1, 256)
    stage(o)
    H, K, Q, KM, V, S0 = BUF, BUF, BUF+56, BUF+72, BUF+88, BUF+104
    VM, SM, PB, OA, OP = ACC, ACC+4, BUF+64, BUF+72, BUF+56
    def kml():
        for c in range(4): o(f"buffer_load_dwordx4 {v(KM+4*c,4)}, v{KMO}, {srd(R_WS)}, s{S_KM} offen offset:{c*512} sc1")
        o(f"buffer_load_dwordx4 {v(VM,4)}, v{L16}, {srd(R_WS)}, s58 offen offset:2048 sc1")
    def kmc(): o(f"v_max3_u32 v{T0}, v{KM}, v{KM+4}, v{KM+8}\nv_max3_u32 v{T0}, v{T0}, v{KM+12}, v{VM}\nv_cmp_eq_u32 vcc, -1, v{T0}")
    o("P3_TOP:")
    o(f"s_lshr_b32 s62, s{S_U}, 1\ns_lshl_b32 s62, s62, 5\ns_add_u32 s62, s62, s{S_HD}\ns_and_b32 s{S_QT}, s{S_U}, 1")
    o(f"s_mul_i32 s{S_KM}, s62, {KVM_SZ}\ns_add_u32 s{S_KM}, s{S_KM}, {KVM}\ns_lshl_b32 s58, s{S_EH}, 10\ns_add_u32 s58, s58, s{S_KM}")
    kml()
    o(f"s_lshl_b32 s60, s{S_U}, 14\nbuffer_load_dword v{XR}, v{OUTO}, {srd(R_X)}, s60 offen")
    o(f"s_add_u32 s76, s{S_U}, 14\ns_min_u32 s76, s76, 127")
    addrs(o, 76)
    o(f"s_lshl_b32 s61, s{S_EH}, 13\ns_add_u32 s63, s63, s61\ns_add_u32 s61, s60, 8192\nv_lshrrev_b32 v{T0}, 1, v{FO}")
    for so, va in ((63, FO), (59, T0), (60, FO), (61, FO)): o(f"buffer_load_dword v{DUM}, v{va}, {srd(R_WS)}, s{so} offen")
    o("s_waitcnt vmcnt(10)")
    for c in range(4):
        o(f"ds_read_b128 {v(Q+4*c,4)}, v{LA} offset:{LQ+c*1024}")
        for tl in range(2): o(f"ds_read_b128 {v(K+4*(tl*4+c),4)}, v{LA} offset:{LK+(tl*4+c)*1024}")
    for c in range(4):
        o(f"s_waitcnt lgkmcnt({9-3*c+c})")
        for tl in range(2): mf(o, S0+4*tl, v(K+4*(tl*4+c), 4), Q+4*c, "0" if c == 0 else S0+4*tl)
        o(f"ds_read_b128 {v(V+4*c,4)}, v{LA} offset:{LV+c*1024}")
    o(f"s_lshl_b32 s60, s{S_QT}, 4\nv_mov_b32 v{T1}, 0xff800000\ns_nop 4")
    for tl in range(2):
        for i in range(4):
            o(f"s_sub_i32 s61, s60, {16*tl+i}\nv_cmp_ge_i32 vcc, s61, v{MSK}\ns_nop 1\nv_cndmask_b32 v{S0+4*tl+i}, v{T1}, v{S0+4*tl+i}, vcc")
    o(f"v_max3_f32 v{Z0}, v{S0}, v{S0+1}, v{S0+2}\nv_max3_f32 v{Z0+3}, v{S0+4}, v{S0+5}, v{S0+6}\nv_max3_f32 v{Z0}, v{Z0}, v{S0+3}, v{S0+7}\nv_max_f32 v{Z0}, v{Z0}, v{Z0+3}")
    o("s_waitcnt lgkmcnt(0)")
    for t in range(14): o(f"ds_read_b128 {v(H+4*t,4)}, v{LA} offset:{LH+t*1024}")
    o("s_waitcnt vmcnt(5)"); kmc(); o("s_cbranch_vccz P3_KM")
    o(f"s_sub_u32 s60, s{S_KM}, {32*KVM_SZ}\ns_max_u32 s60, s60, {KVM}\ns_mov_b32 s61, 0\nP3_W1:")
    o(f"buffer_load_dword v{T0}, off, {srd(R_WS)}, s60 sc1\ns_add_u32 s61, s61, 1\ns_waitcnt vmcnt(0)\nv_cmp_eq_u32 vcc, -1, v{T0}\ns_cbranch_vccz P3_W2")
    o(f"s_cmp_lt_u32 s61, {SPIN_MAX}\ns_cbranch_scc1 P3_W1\nP3_FAIL:")
    spin_fail(o, 512)
    o(f"P3_W2:"); kml()
    o(f"s_add_u32 s61, s61, 1\ns_cmp_lt_u32 s61, {SPIN_MAX}\ns_cbranch_scc0 P3_FAIL\ns_waitcnt vmcnt(0)"); kmc(); o("s_cbranch_vccnz P3_W2")
    o("P3_KM:")
    for c in range(4): mf(o, SM, v(KM+4*c, 4), Q+4*c, "0" if c == 0 else SM)
    o(f"s_add_u32 s63, s{S_OB}, s{S_SL}\ns_lshl_b32 s60, s{S_HD}, 12\ns_lshl_b32 s61, s{S_EH}, 11\ns_add_u32 s58, s60, s61\ns_add_u32 s60, s58, s63")
    o(f"s_nop 3\nv_max3_f32 v{T0}, v{Z0}, v{SM}, v{SM+1}")
    xl(o, "v_max_f32", T0, T1)
    o(f"v_mul_f32 v{T0}, s{S_SC}, v{T0}")
    P = [S0+i for i in range(8)] + [SM, SM+1]
    for r in P: o(f"v_fma_f32 v{r}, v{r}, s{S_SC}, -v{T0}")
    for r in P: o(f"v_exp_f32 v{r}, v{r}")
    o(f"v_add_f32 v{T0}, v{P[0]}, v{P[1]}")
    for r in P[2:]: o(f"v_add_f32 v{T0}, v{T0}, v{r}")
    xl(o, "v_add_f32", T0, T1)
    o(f"v_rcp_f32 v{T0}, v{T0}\ns_nop 0")
    for r in P: o(f"v_mul_f32 v{r}, v{r}, v{T0}")
    for x in range(4): o(f"v_cvt_pk_bf16_f32 v{PB+x}, v{S0+2*x}, v{S0+2*x+1}")
    o(f"v_cvt_pk_bf16_f32 v{Z0}, v{SM}, v{SM+1}\nv_cvt_pk_bf16_f32 v{Z0+3}, v{SM}, v{SM+1}\ns_nop 1")
    for x in range(4): mf(o, OA+4*x, v(V+4*x, 4), PB, "0")
    for x in range(4): o(f"v_mfma_f32_16x16x16_bf16 {v(OA+4*x,4)}, {v(VM+2*(x//2),2)}, {v(Z0+2*(x%2),2)}, {v(OA+4*x,4)}")
    o("s_waitcnt lgkmcnt(0)")
    hm = lambda t: [mf(o, ACC+8+4*tau, v(WD+(t*2+tau)*4, 4), H+4*t, "0" if t == 0 else ACC+8+4*tau) for tau in range(2)]
    hm(0); o("s_nop 2")
    for c in range(2):
        for i in range(4): o(f"v_cvt_pk_bf16_f32 v{OP+4*c+i}, v{OA+8*c+i}, v{OA+8*c+4+i}")
    st2(o, OP, 60, 4)
    for t in range(1, 14): hm(t)
    o(f"s_lshl_b32 s60, s{S_W}, 15\ns_add_u32 s63, s60, s63\ns_mov_b32 s60, s63\ns_mov_b32 s61, 0")
    NR = 28
    rg = lambda t: BUF+4*((t+14)%NR)
    def old(t):
        o(f"buffer_load_dwordx4 {v(rg(t),4)}, v{L16}, {srd(R_WS)}, s60 offen offset:{(t%4)*1024} sc1")
        if t % 4 == 3: o("s_add_u32 s60, s60, 4096")
    for t in range(NR): old(t)
    issued = NR
    for t in range(0, 32, 2):
        o(f"s_waitcnt vmcnt({issued-2-t})\nP3_OC{t}:")
        o(f"v_max_u32 v{T0}, v{rg(t)}, v{rg(t+1)}\nv_cmp_eq_u32 vcc, -1, v{T0}\ns_cbranch_vccnz P3_OR{t}")
        if t == 30:
            o(f"s_add_u32 s{S_SL}, s{S_SL}, {OSL}\ns_cmp_eq_u32 s{S_SL}, {3*OSL}\ns_cselect_b32 s{S_SL}, 0, s{S_SL}")
            o(f"s_add_u32 s60, s{S_SL}, {OSL}\ns_cmp_eq_u32 s60, {3*OSL}\ns_cselect_b32 s60, 0, s60\ns_add_u32 s60, s60, s{S_OB}\ns_add_u32 s58, s58, s60")
            for i in range(4): o(f"v_mov_b32 v{rg(4)+i}, -1")
        for tt in (t, t+1):
            for tau in range(2): mf(o, ACC+4*tau, a_(tt*8+tau*4, 4), rg(tt), "0" if tt == 0 else ACC+4*tau)
        if t >= 2 and issued < 32: old(issued); old(issued+1); issued += 2
    o(f"s_lshl_b32 s77, s{S_U}, 14\ns_add_u32 s{S_U}, s{S_U}, 14\ns_cmp_ge_u32 s{S_U}, 128\ns_cbranch_scc1 P3_NOST")
    st2(o, rg(4), 58, 0)
    stage(o)
    o("P3_NOST:")
    o(f"s_lshl_b32 s60, s{S_W}, 12\ns_add_u32 s60, s60, s{S_PAR}\ns_add_u32 s60, s60, {LRED}\nv_add_u32 v{T0}, s60, v{L16}\nv_add_u32 v{T1}, s{S_PAR}, v{LRD}")
    for x in (2, 3): o(f"ds_write_b128 v{T0}, {v(ACC+4*x,4)} offset:{x*1024}")
    o("s_nop 3")
    for x in (0, 1): o(f"ds_write_b128 v{T0}, {v(ACC+4*x,4)} offset:{x*1024}")
    o("s_waitcnt lgkmcnt(0)\ns_barrier")
    R = BUF
    for half in range(2):
        for ww in range(2*half, 2*half+2):
            for x in range(4): o(f"ds_read_b32 v{R+ww*4+x}, v{T1} offset:{ww*4096+x*1024}")
        if half == 0: o("s_waitcnt lgkmcnt(1)")
    o(f"s_xor_b32 s{S_PAR}, s{S_PAR}, 16384\ns_waitcnt lgkmcnt(0)")
    for x in range(4): o(f"v_add_f32 v{R+x}, v{R+x}, v{R+4+x}\nv_add_f32 v{R+8+x}, v{R+8+x}, v{R+12+x}")
    for x in range(4): o(f"v_add_f32 v{R+x}, v{R+x}, v{R+8+x}")
    def rnd2(x, y): o(f"v_cvt_pk_bf16_f32 v{T0}, v{x}, v{y}\nv_lshlrev_b32 v{x}, 16, v{T0}\nv_and_b32 v{y}, 0xffff0000, v{T0}")
    rnd2(R, R+1); rnd2(R+2, R+3)
    o(f"v_lshlrev_b32 v{R+4}, 16, v{XR}\nv_and_b32 v{R+5}, 0xffff0000, v{XR}\nv_add_f32 v{R}, v{R}, v{R+4}\nv_add_f32 v{R+1}, v{R+1}, v{R+5}")
    rnd2(R, R+1)
    o(f"v_add_f32 v{R}, v{R}, v{R+2}\nv_add_f32 v{R+1}, v{R+1}, v{R+3}\nv_cvt_pk_bf16_f32 v{T0}, v{R}, v{R+1}")
    o(f"buffer_store_dword v{T0}, v{OUTO}, {srd(R_OUT)}, s77 offen")
    if dbg:
        o(f"s_memrealtime s[62:63]\ns_waitcnt lgkmcnt(0)\nv_mov_b32 v{R}, s62\ns_lshl_b32 s62, s{S_ROLE}, 2\ns_add_u32 s62, s62, s{S_W}\ns_lshl_b32 s62, s62, 7")
        o(f"s_mul_i32 s63, s{S_U}, 4682\ns_lshr_b32 s63, s63, 16\ns_lshl_b32 s63, s63, 2\ns_add_u32 s62, s62, s63\ns_add_u32 s62, s62, {TS+7*4}\nv_mov_b32 v{R+1}, 0\nbuffer_store_dword v{R}, v{R+1}, {srd(R_WS)}, s62 offen")
    o(f"s_cmp_lt_u32 s{S_U}, 128\ns_cbranch_scc1 P3_TOP\ns_branch P3_END")
    for t in range(0, 32, 2):
        o(f"P3_OR{t}:\ns_add_u32 s59, s63, {(t//4)*4096}")
        for tt in (t, t+1): o(f"buffer_load_dwordx4 {v(rg(tt),4)}, v{L16}, {srd(R_WS)}, s59 offen offset:{(tt%4)*1024} sc1")
        o(f"s_add_u32 s61, s61, 1\ns_cmp_lt_u32 s61, {SPIN_MAX}\ns_cbranch_scc0 P3_FAIL\ns_waitcnt vmcnt(0)\ns_branch P3_OC{t}")
    o("P3_END:")
```

```python
from common import *
import math, struct, os
X = os.environ.get('X','').split(',')
fbits = lambda x: hex(struct.unpack("<I", struct.pack("<f", x))[0])
L_K, L_O, L_QK, L_WV0, L_STR = 0, 8192, 10240, 16384, 36864
LW_V, LW_M = 32768, 34816
QROW = 288; KOFF = 8*QROW
L16, IDX, WL, QKW, XQ, XK, OW, RSR, AGW, FLG = 1, 2, 3, 4, 5, 6, 7, 8, 9, 10
T0, T1 = 0, 11
SEL = 12
MA = 16
QA = 48
KA = 56
VA = 72
XQR = 80
WIN = 96
S_H, S_S, S_AG, S_RSW, S_RSR, S_RSR2, S_KVM, S_KV, S_FKV, S_FKM, S_AGW = 64, 65, 66, 67, 68, 69, 70, 71, 74, 75, 76
S_HM = 72
S_SC = 77
S_O1, S_O2, S_O3 = 78, 79, 80
S_M0K, S_M0V = 81, 82
S_RSW2 = S_RSR2
S_PAR, S_PA, S_PB, S_PC, S_FD = 8, 9, 10, 11, 12
X2 = 64
WINL = [("q",0,0,WIN),("q",0,1,WIN+8),("q",1,0,WIN+16),("q",1,1,WIN+24),("k",0,0,XQR),("k",0,1,XQR+8),
        ("v",6,0,WIN),("v",6,1,WIN+8),("v",7,0,WIN+16),("v",7,1,WIN+24),
        ("o",5,0,X2),("o",5,1,XQR+8),("o",6,0,WIN),("o",6,1,WIN+8),("o",7,0,WIN+16),("o",7,1,WIN+24)]
win = {x[:3]: (n, x[3]) for n, x in enumerate(WINL)}
res = {}
def _alloc():
    lst = [(m, i, j) for m in "qkvo" for i in range(8) for j in range(2) if (m, i, j) not in win]
    assert len(lst) == 48
    for n, key in enumerate(lst):
        res[key] = ("a", n*8) if n < 32 else ("v", 128+(n-32)*8)
_alloc()
def opnd(mname, i, j):
    if (mname, i, j) in res:
        k, b = res[(mname, i, j)]; return f"{k}[{b}:{b+7}]"
    b = win[(mname, i, j)][1]; return f"v[{b}:{b+7}]"
def win_rd(key, x):
    n, r = win[key]
    return f"ds_read_b128 {v(r+4*x,4)}, v{WL} offset:{n*2048+x*1024}"
def smf(o, d, a, b): o(f"v_smfmac_f32_16x16x64_bf16 {v(d,4)}, {v(a,4)}, {b}, v{IDX}")
def mf(o, d, a, b, c): o(f"v_mfma_f32_16x16x32_bf16 {v(d,4)}, {v(a,4)}, {v(b,4)}, {c if isinstance(c,str) else v(c,4)}")

def load_weights(o):
    STG, TMP = 16, 80
    o(f"""
    v_lshrrev_b32 v13, 5, v0
    v_bfe_u32 v14, v0, 4, 1
    v_and_b32 v15, 15, v0
    v_lshlrev_b32 v12, 18, v13
    v_lshl_add_u32 v12, v14, 16, v12
    v_lshl_add_u32 v12, v15, 2, v12
    s_lshl_b32 s60, s{S_H}, 8
    s_lshl_b32 s61, s{S_W}, 6
    s_add_u32 s60, s60, s61
    v_add_u32 v12, s60, v12
    v_lshlrev_b32 v11, 13, v13
    v_lshl_add_u32 v11, v14, 15, v11
    v_lshl_add_u32 v11, v15, 4, v11
    s_lshl_b32 s60, s{S_H}, 17
    s_lshl_b32 s61, s{S_W}, 8
    s_add_u32 s60, s60, s61
    v_add_u32 v11, s60, v11
    """)
    for j in range(4): o(f"s_xor_b32 s{84+j}, s{S_W}, {j}\ns_lshl_b32 s{84+j}, s{84+j}, 20")
    groups = [(m, i) for m in "qkv" for i in range(8)] + [("o", x) for x in range(8)]
    def issue(n):
        m, i = groups[n]; b = STG+(n%4)*16
        if m == "o":
            if i == 0: mk_srd(o, R_B, S_WO, 4096*512*2)
            for y in range(2):
                kp, jj = (2*i+y)//8, (2*i+y)%8
                for bb in range(2):
                    e = 64*kp+16*(jj//4)+4*((jj%4)//2)+2*bb+(jj%2)
                    o(f"s_mov_b32 s60, {e*1024}\nbuffer_load_dwordx4 {v(b+y*8+bb*4,4)}, v11, {srd(R_B)}, s60 offen")
            return 4
        if i == 0: mk_srd(o, R_A if m != "k" else R_B, {"q": S_WQ, "k": S_WK, "v": S_WV}[m], 512*4096*2)
        for jj in range(8):
            for bb in range(2):
                d = 4*(i%2)+64*(jj//4)+16*(jj%2)+2*((jj%4)//2)+bb
                o(f"s_add_u32 s60, s{84+i//2}, {d*8192}\nbuffer_load_dword v{b+2*jj+bb}, v12, {srd(R_A if m != 'k' else R_B)}, s60 offen")
        return 16
    cnt = {}
    AH = 3
    for n in range(AH): cnt[n] = issue(n)
    for n, (m, i) in enumerate(groups):
        o(f"s_waitcnt vmcnt({sum(cnt[x] for x in range(n+1, min(n+AH, len(groups))))})")
        b = STG+(n%4)*16
        if m == "o":
            for y in range(2):
                kp, jj = (2*i+y)//8, (2*i+y)%8
                for tl in range(8):
                    src = f"v{b+y*8+4+tl//2}, v{b+y*8+tl//2}, s{S_PL if tl%2==0 else S_PH}"
                    if ("o", tl, kp) in res:
                        k, r = res[("o", tl, kp)]; assert k == "v"
                        o(f"v_perm_b32 v{r+jj}, {src}")
                    else: o(f"v_perm_b32 v{TMP+8*(win[('o',tl,kp)][0]-10)+jj}, {src}")
        else:
            for tau in range(2):
                key = (m, i, tau)
                direct = key in res and res[key][0] == "v"
                for jj in range(8):
                    dst = res[key][1]+jj if direct else TMP+tau*8+jj
                    o(f"v_perm_b32 v{dst}, v{b+2*jj+1}, v{b+2*jj}, s{S_PL if tau==0 else S_PH}")
                if key not in res:
                    for x in range(2):
                        o(f"ds_write_b128 v{WL}, {v(TMP+tau*8+4*x,4)} offset:{win[key][0]*2048+x*1024}")
                elif not direct:
                    for jj in range(8): o(f"v_accvgpr_write_b32 a{res[key][1]+jj}, v{TMP+tau*8+jj}")
            if (m, i, 0) not in res: o("s_waitcnt lgkmcnt(0)")
        if n+AH < len(groups): cnt[n+AH] = issue(n+AH)
    for x in range(12): o(f"ds_write_b128 v{WL}, {v(TMP+4*x,4)} offset:{10*2048+x*1024}")
    o("s_waitcnt lgkmcnt(0)")

def kv_dma(o):
    o(f"s_mov_b32 m0, s{S_M0K}\ns_add_u32 s60, s{S_KV}, 8192")
    for i in range(2): o(f"buffer_load_dwordx4 v{L16}, {srd(R_WS)}, s{S_KV} offen offset:{i*1024} lds")
    o(f"s_mov_b32 m0, s{S_M0V}\ns_nop 0")
    for i in range(2): o(f"buffer_load_dwordx4 v{L16}, {srd(R_WS)}, s60 offen offset:{i*1024} lds")
def dma(o, so, i):
    if "nodma" not in X: o(f"buffer_load_dwordx4 v{L16}, {srd(R_WS)}, s{so} offen offset:{i*1024} lds")

def flag_load(o):
    o(f"v_bfe_u32 v{T1}, v{L16}, 2, 4\nbuffer_load_dword v{FLG}, v{T1}, {srd(R_WS)}, s{S_FKV} offen sc1")
def flag_check(o, code):
    L, D = o.lab("FW"), o.lab("FWD")
    o(f"v_cmp_ne_u32 vcc, 1, v{FLG}\ns_mov_b32 s61, 0\ns_nop 3\ns_cmp_eq_u32 vcc_hi, 0\ns_cbranch_scc1 {D}\n{L}:")
    flag_load(o)
    o(f"s_waitcnt vmcnt(0)\nv_cmp_ne_u32 vcc, 1, v{FLG}\ns_cbranch_vccz {D}\ns_add_u32 s61, s61, 1\ns_cmp_lt_u32 s61, {SPIN_MAX}\ns_cbranch_scc1 {L}")
    spin_fail(o, code)
    o(f"{D}:")

def pld(o, r, so):
    for i in range(2): o(f"buffer_load_dwordx4 {v(r+4*i,4)}, v{L16}, {srd(R_WS)}, s{so} offen offset:{i*1024} sc1")
def bound(o, D): o(f"s_add_u32 s61, s61, 1\ns_cmp_lt_u32 s61, {SPIN_MAX}\ns_cbranch_scc0 {D}")
def poll_ag(o, r, so, code, spec1, spec2):
    L, E, D = o.lab("PL"), o.lab("PE"), o.lab("PLD")
    o(f"s_mov_b32 s61, 0\ns_branch {E}\n{L}:")
    pld(o, r, so); bound(o, D)
    o(f"{E}:\ns_waitcnt vmcnt(3)")
    o(f"v_max3_u32 v{T0}, v{r}, v{r+1}, v{r+2}\nv_max_u32 v{T0}, v{T0}, v{r+3}")
    o(spec1); o("s_waitcnt vmcnt(2)")
    o(f"v_max3_u32 v{T0}, v{T0}, v{r+4}, v{r+5}\nv_max3_u32 v{T0}, v{T0}, v{r+6}, v{r+7}")
    o(spec2)
    o(f"v_cmp_eq_u32 vcc, -1, v{T0}\ns_cbranch_vccnz {L}")
    return D, code
def poll_rs(o, ra, rb, so, code, spec):
    L, OK, D = o.lab("PL"), o.lab("PK"), o.lab("PLD")
    o(f"s_mov_b32 s61, 0\n{L}:")
    for n, r in enumerate((ra, rb)):
        o("s_waitcnt vmcnt(3)"); o(spec(r, 0))
        o(f"v_xor_b32 v{T0}, s{S_PAR}, v{r}\ns_waitcnt vmcnt(2)"); o(spec(r, 1))
        o(f"v_xor_b32 v{T1}, s{S_PAR}, v{r+4}\nv_or_b32 v{T0}, v{T0}, v{T1}\nv_and_b32 v{T0}, 1, v{T0}\nv_cmp_ne_u32 vcc, 0, v{T0}\ns_cbranch_vccz {OK}")
        pld(o, r, so); bound(o, D)
    o(f"s_branch {L}\n{OK}:")
    return D, code

def z64(r): return f"v_mov_b64 {v(r,2)}, 0"
S_ONE = 62
PUB = X2+4
PF = X2+3
def pub_read(o):
    o(f"v_bfe_u32 v{T0}, v{L16}, 6, 3\nv_and_b32 v{T1}, 48, v{L16}\nv_mad_u32_u24 v{T0}, v{T0}, s{S_PB}, v{T1}\nv_lshrrev_b32 v{T1}, 9, v{L16}")
    o(f"v_mad_u32_u24 v{T0}, v{T1}, s{S_PC}, v{T0}\nv_add_u32 v{T0}, s{S_PA}, v{T0}\nds_read_b128 {v(PUB,4)}, v{T0}")
def pad(o, name):
    n = int(os.environ.get(name, "0"))
    while n > 0: o(f"s_nop {min(n,16)-1}"); n -= 16
def wins(o, a, b):
    for key in WINL[a:b]:
        for x in range(2): o(win_rd(key[:3], x))
def sh1(o):
    wins(o, 0, 3); pub_read(o)
def sh2(o):
    wins(o, 3, 6)
    for r in range(QA, QA+16, 2): o(z64(r))
def sh3(o):
    for r in range(VA, VA+8, 2): o(z64(r))
    for j, so in enumerate((S_O1, S_O2, S_O3)): o(f"v_add_u32 v{X2+j}, s{so}, v{WL}")
def sh4(o):
    o(f"s_sub_u32 s{S_FD}, s{S_FKV}, s{S_KV}")
    o(f"v_bfe_u32 v{T0}, v{L16}, 8, 1\nv_and_b32 v{PF}, 0xf0, v{L16}\nv_lshlrev_b32 v{T0}, 13, v{T0}\nv_lshl_add_u32 v{PF}, v{PF}, 3, v{T0}")
    o(f"s_mov_b32 exec_lo, 0\nv_bfe_u32 v{PF}, v{L16}, 2, 4\nv_add_u32 v{PF}, s{S_FD}, v{PF}\ns_mov_b32 exec_lo, -1")

NP = 9
def step_loop(o, sc, dbg):
    TOP, FIN = o.lab("RT"), o.lab("RF")
    prof = dbg == 2 and sc == ""
    def tm(i):
        if prof: o(f"s_memtime s[{84+2*i}:{85+2*i}]")
    if prof:
        for i in range(NP+2): o(f"s_mov_b32 s{40+i}, 0")
    q = []
    def ds(txt, tag=None): o(txt); q.append(tag)
    def wl(tag):
        n = len(q)-1-max(i for i, t in enumerate(q) if t == tag)
        assert n <= 15
        o(f"s_waitcnt lgkmcnt({n})")
    HM = f"s[{S_HM}:{S_HM+1}]"
    acc = {"q": QA, "k": KA, "v": VA}
    def Z(m, i, tau): smf(o, acc[m]+4*tau, MA+4*i, opnd(m, i, tau))
    fails = []
    pld(o, MA, S_AG); pld(o, MA, S_AG)
    o(f"{TOP}:")
    tm(0)
    fails.append(poll_ag(o, MA, S_AG, 4,
         f"ds_write_b128 v{WL}, {v(MA,4)} offset:{LW_M}", f"ds_write_b128 v{WL}, {v(MA+4,4)} offset:{LW_M+1024}"))
    if prof: o("s_add_u32 s49, s49, s61")
    tm(1)
    pub = f"buffer_store_dwordx4 {v(PUB,4)}, v{L16}, {srd(R_WS)}, s{S_KVM} offen sc1"
    for m in "qk":
        for i in range(2): Z(m,i,0); Z(m,i,1)
    o("s_waitcnt vmcnt(0) lgkmcnt(0)\ns_barrier")
    tm(2)
    mrd = lambda i: ds(f"ds_read_b128 {v(MA+4*i,4)}, v{X2+(i-2)//2} offset:{LW_M+(i%2)*1024}", f"m{i}")
    krd = lambda x: ds(f"ds_read_b128 {v(WIN+4*x,4)}, v{L16} offset:{L_K+((x%2)*4+x//2)*1024}", "K")
    mrd(2); mrd(3)
    if "nopf" not in X: o(f"buffer_load_dword v{FLG}, v{PF}, {srd(R_WS)}, s{S_KV} offen")
    Z("v",0,0); mrd(4); mrd(5); Z("v",0,1); mrd(6); mrd(7); Z("v",1,0); krd(0); krd(1); Z("v",1,1); krd(2)
    for i in range(2, 8):
        wl(f"m{i}"); Z("q",i,0)
        if i < 7: krd(i+1)
        Z("q",i,1)
        if i == 4 and "nopub" not in X: o(pub)
        if i == 2: o(f"v_mov_b64 {v(MA,2)}, s[{S_ONE}:{S_ONE+1}]")
        if i == 3: o(f"v_mov_b64 {v(MA+2,2)}, s[{S_ONE}:{S_ONE+1}]")
    add = lambda r: o(f"v_add_f32 v{r}, v{r}, v{r+2}")
    def cvt(d, x, y): o(f"v_cvt_pk_bf16_f32 v{d}, v{x}, v{y}")
    Z("k",2,0); Z("k",2,1)
    add(QA); add(QA+4); cvt(T0, QA, QA+4)
    Z("k",3,0); ds(f"ds_write_b32 v{QKW}, v{T0}", "qw")
    add(QA+1); add(QA+5); cvt(T1, QA+1, QA+5)
    Z("k",3,1); ds(f"ds_write_b32 v{QKW}, v{T1} offset:{QROW}", "qw")
    Z("k",4,0); Z("k",4,1); Z("k",5,0); Z("k",5,1)
    wl("qw"); o("s_barrier")
    tm(3)
    qrd = lambda c: ds(f"ds_read_b128 {v(XQR+4*c,4)}, v{XQ} offset:{c*64}", f"q{c}")
    qrd(0); qrd(1); Z("k",6,0); qrd(2); qrd(3); Z("k",6,1); Z("k",7,0); Z("k",7,1)
    def S(c, tl): mf(o, QA+4*tl, WIN+8*c+4*tl, XQR+4*c, "0" if c == 0 else QA+4*tl)
    vw = lambda n, x: ds(win_rd(WINL[6+n][:3], x), f"vw{n}")
    wl("q0"); S(0,0); S(0,1)
    wl("q1"); add(KA); add(KA+4)
    S(1,0); cvt(T0, KA, KA+4); add(KA+1)
    S(1,1); ds(f"ds_write_b32 v{QKW}, v{T0} offset:{KOFF}", "kw"); add(KA+5); cvt(T1, KA+1, KA+5)
    wl("q2"); S(2,0); ds(f"ds_write_b32 v{QKW}, v{T1} offset:{KOFF+QROW}", "kw"); vw(0,0); vw(0,1)
    S(2,1); wl("q3")
    S(3,0); vw(1,0); vw(1,1)
    S(3,1)
    Z("v",2,0)
    wl("kw"); o("s_barrier")
    tm(4)
    xrd = lambda c: ds(f"ds_read_b128 {v(KA+4*c,4)}, v{XK} offset:{KOFF+c*64}", f"x{c}")
    xrd(0); xrd(1); Z("v",2,1); xrd(2); xrd(3)
    o(f"v_max3_f32 v{T0}, v{QA}, v{QA+1}, v{QA+2}")
    Z("v",3,0); vw(2,0); vw(2,1)
    o(f"v_max3_f32 v{T1}, v{QA+4}, v{QA+5}, v{QA+6}\nv_max3_f32 v{T0}, v{T0}, v{QA+3}, v{QA+7}")
    Z("v",3,1); vw(3,0); vw(3,1)
    o(f"v_max_f32 v{T0}, v{T0}, v{T1}\nv_mov_b32 v{T1}, v{T0}")
    SM = MA+4
    cn = lambda i: o(f"v_cndmask_b32 v{QA+i}, v{QA+i}, v{QA+4+i}, {HM}")
    wl("x0"); mf(o, SM, KA, XQR, "0"); wl("x1")
    o(f"v_permlane16_swap_b32 v{T0}, v{T1}")
    mf(o, SM, KA+4, XQR+4, SM); wl("x2"); cn(0); o(f"v_max_f32 v{T0}, v{T0}, v{T1}")
    mf(o, SM, KA+8, XQR+8, SM); wl("x3"); cn(1); cn(2)
    mf(o, SM, KA+12, XQR+12, SM); cn(3)
    VX = KA
    Z("v",4,0)
    for tau in range(2): ds(f"ds_read_b128 {v(VX+4*tau,4)}, v{WL} offset:{LW_V+tau*1024}", "V")
    Z("v",4,1)
    ow = lambda n, x: ds(win_rd(WINL[10+n][:3], x), f"ow{n}")
    ow(0,0); ow(0,1)
    o(f"v_max3_f32 v{T0}, v{T0}, v{SM}, v{SM+1}\nv_max3_f32 v{T0}, v{T0}, v{SM+2}, v{SM+3}\nv_mov_b32 v{T1}, v{T0}")
    Z("v",5,0); ow(1,0); ow(1,1)
    o(f"v_permlane32_swap_b32 v{T0}, v{T1}")
    Z("v",5,1); wl("vw3")
    o(f"v_max_f32 v{T0}, v{T0}, v{T1}")
    fm = lambda r: o(f"v_fma_f32 v{r}, v{r}, s{S_SC}, -v{T0}")
    ex = lambda r: o(f"v_exp_f32 v{r}, v{r}")
    Z("v",6,0); o(f"v_mul_f32 v{T0}, s{S_SC}, v{T0}")
    Z("v",6,1); fm(SM)
    Z("v",7,0); ow(2,0); ow(2,1); fm(SM+1)
    Z("v",7,1); o(f"s_mov_b32 m0, s{S_M0K}")
    PB, PM, VM, OP = XQR, XQR+4, XQR+6, XQR+6
    O0, O1, OM, ZZ = MA+8, MA+12, MA+16, MA+20
    ex(SM); ex(SM+1)
    for i in range(4): fm(QA+i)
    cvt(SM, SM, SM+1)
    add(VA); add(VA+1)
    o(f"v_cndmask_b32 v{PM}, v{SM}, 0, {HM}\nv_cndmask_b32 v{PM+1}, 0, v{SM}, {HM}")
    add(VA+4); add(VA+5)
    o(f"v_mfma_f32_16x16x16_bf16 {v(ZZ,4)}, {v(MA,2)}, {v(PM,2)}, 0"); ow(3,0)
    cvt(VM, VA, VA+1); cvt(VM+1, VA+4, VA+5)
    ex(QA); ex(QA+1); ex(QA+2); cvt(T0, QA, QA+1); ex(QA+3)
    o(f"v_mfma_f32_16x16x16_bf16 {v(OM,4)}, {v(VM,2)}, {v(PM,2)}, 0"); ow(3,1)
    dp = lambda x, src, qp: o(f"v_mov_b32_dpp v{PB+x}, v{src} quad_perm:{qp} row_mask:0xf bank_mask:0xf")
    cvt(T1, QA+2, QA+3)
    dp(0, T0, "[0,1,0,1]"); dp(2, T0, "[2,3,2,3]"); dp(1, T1, "[0,1,0,1]"); dp(3, T1, "[2,3,2,3]")
    wl("V"); ds(f"ds_write_b64 v{OW}, {v(VM,2)} offset:{L_QK-L_O}"); o(f"s_cmp_eq_u32 s{S_S}, 63")
    mf(o, ZZ, MA, PB, ZZ); ow(4,0); ow(4,1); o(f"s_cbranch_scc1 {FIN}")
    mf(o, O0, VX, PB, OM); ow(5,0); ow(5,1)
    mf(o, O1, VX+4, PB, OM)
    o(f"s_nop 0\nv_rcp_f32 v{T0}, v{ZZ}")
    o(z64(MA+24)); o(z64(MA+26)); o(z64(MA+28)); o(z64(MA+30)); o("s_nop 1")
    for i in range(4): o(f"v_cndmask_b32 v{O0+i}, v{O0+i}, v{O1+i}, {HM}")
    for i in range(4): o(f"v_mul_f32 v{O0+i}, v{O0+i}, v{T0}")
    cvt(OP, O0, O0+1); cvt(OP+1, O0+2, O0+3)
    ds(f"ds_write_b64 v{OW}, {v(OP,2)}")
    tm(5)
    for r in range(MA, MA+24, 2): o(z64(r))
    o("s_waitcnt lgkmcnt(0)\ns_barrier")
    OA = QA
    for kp in range(2): ds(f"ds_read_b128 {v(OA+4*kp,4)}, v{L16} offset:{L_O+kp*1024}", f"o{kp}")
    o(f"s_add_u32 s{S_S}, s{S_S}, 1\ns_xor_b32 s{S_AG}, s{S_AG}, 8192\ns_add_u32 s{S_KVM}, s{S_KVM}, {32*KVM_SZ}")
    wl("o0")
    tm(6)
    PK = KA
    W = lambda tl, kp: smf(o, MA+4*tl, OA+4*kp, opnd("o", tl, kp))
    W(0,0); wl("o1"); W(0,1); W(1,0); W(1,1)
    for tl in range(2, 8):
        a = MA+4*(tl-2)
        add(a); W(tl,0)
        if tl == 6: o(f"buffer_store_dwordx4 {v(PK,4)}, v{RSR}, {srd(R_WS)}, s{S_RSW} offen{sc}")
        add(a+1); cvt(PK+tl-2, a, a+1); W(tl,1)
        if tl in (2, 6): o(f"v_and_or_b32 v{PK+tl-2}, v{PK+tl-2}, -2, s{S_PAR}")
    a = MA+24
    add(a); add(a+1); cvt(PK+6, a, a+1); o("s_nop 3")
    a = MA+28
    add(a); add(a+1); cvt(PK+7, a, a+1)
    o(f"buffer_store_dwordx4 {v(PK+4,4)}, v{RSR}, {srd(R_WS)}, s{S_RSW2} offen{sc}")
    tm(7)
    dma(o, S_KV, 0); dma(o, S_KV, 1)
    o(f"s_add_u32 s59, s{S_KV}, 8192\ns_mov_b32 m0, s{S_M0V}")
    o(f"s_add_u32 s{S_KV}, s{S_KV}, {32*16384}\ns_xor_b32 s60, s{S_AGW}, 8192\nv_mov_b32 v{MA}, -1")
    RB, RD, RC = MA+8, MA+16, MA+24
    sh1(o); pad(o, "P1"); pld(o, RB, S_RSR)
    sh2(o); pad(o, "P2"); pld(o, RC, S_RSR)
    mtxt = lambda r, i: f"v_mfma_f32_16x16x32_bf16 {v(RD,4)}, {v(SEL,4)}, {v(r+4*i,4)}, {v(RD,4) if i else 0}"
    fails.append(poll_rs(o, RB, RC, S_RSR, 16, mtxt))
    if prof: o("s_add_u32 s50, s50, s61")
    tm(8)
    o("s_nop 3")
    for sh in (4, 8):
        for i in range(2): o(f"v_add_f32_dpp v{RD+i}, v{RD+i}, v{RD+i} row_ror:{sh} row_mask:0xf bank_mask:0xf")
        if sh == 4: o("s_nop 0")
    o(f"v_cvt_pk_bf16_f32 v{RD}, v{RD}, v{RD+1}")
    o(f"buffer_store_dword v{RD}, v{AGW}, {srd(R_WS)}, s60 offen{sc}")
    o(f"buffer_store_dword v{MA}, v{AGW}, {srd(R_WS)}, s{S_AGW} offen{sc}\ns_mov_b32 s{S_AGW}, s60\ns_xor_b32 s{S_PAR}, s{S_PAR}, 1")
    dma(o, 59, 0); dma(o, 59, 1)
    flag_check(o, 8)
    o(f"s_add_u32 s{S_FKV}, s{S_FKV}, 512\ns_min_u32 s{S_FKV}, s{S_FKV}, s83")
    sh3(o); pad(o, "P3"); pld(o, MA, S_AG)
    sh4(o); pad(o, "P4"); pld(o, MA, S_AG)
    o("s_waitcnt lgkmcnt(0)")
    if prof:
        o("s_memtime s[6:7]\ns_waitcnt lgkmcnt(0)")
        for i in range(NP):
            o(f"s_sub_u32 s5, s{84+2*i+2 if i < NP-1 else 6}, s{84+2*i}\ns_add_u32 s{40+i}, s{40+i}, s5")
        tr = int(os.environ.get("TR", "-1"))
        o("s_mov_b32 s5, s84" if tr < 0 else f"s_sub_u32 s5, s{84+2*tr+2 if tr < NP-1 else 6}, s{84+2*tr}")
        o(f"s_lshl_b32 s7, s{S_W}, 6\ns_add_u32 s7, s7, s{S_S}\ns_lshl_b32 s7, s7, 2\ns_add_u32 s7, s7, {L_QK+4608}\nv_mov_b32 v{T0}, s7\nv_mov_b32 v{T1}, s5\nds_write_b32 v{T0}, v{T1}")
    o(f"s_branch {TOP}")
    for lab, code in fails:
        o(f"{lab}:"); spin_fail(o, code)
    o(f"{FIN}:\ns_waitcnt lgkmcnt(0)\ns_barrier\ns_add_u32 s{S_KVM}, s{S_KVM}, {32*KVM_SZ}")
    pub_read(o)
    o(f"s_waitcnt lgkmcnt(0)\n{pub}\ns_waitcnt vmcnt(0)")

def recurrence(o, dbg):
    o(f"s_mov_b32 s{S_H}, s{S_ROLE}\ns_barrier")
    o(f"""
    v_lshlrev_b32 v{L16}, 4, v0
    v_lshrrev_b32 v20, 4, v0
    v_and_b32 v21, 15, v0
    v_bfe_u32 v22, v0, 1, 1
    v_cmp_eq_u32 s[{S_HM}:{S_HM+1}], 1, v22
    v_mov_b32 v23, 0x4444
    v_mov_b32 v24, 0xeeee
    s_mul_i32 s60, s{S_W}, {L_STR}
    v_cndmask_b32 v{IDX}, v23, v24, s[{S_HM}:{S_HM+1}]
    s_add_u32 s60, s60, {L_WV0}
    v_add_u32 v{WL}, s60, v{L16}
    s_add_u32 s{S_M0V}, s60, {LW_V}
    s_lshl_b32 s{S_M0K}, s{S_W}, 11
    v_mul_u32_u24 v23, {2*QROW}, v20
    v_lshl_add_u32 v23, v21, 2, v23
    s_lshl_b32 s61, s{S_W}, 6
    s_add_u32 s61, s61, {L_QK}
    v_add_u32 v{QKW}, s61, v23
    v_lshrrev_b32 v23, 2, v21
    v_and_b32 v24, 1, v0
    v_lshl_add_u32 v25, v23, 1, v24
    v_mul_u32_u24 v25, {QROW}, v25
    v_lshl_add_u32 v25, v20, 4, v25
    v_add_u32 v{XQ}, {L_QK}, v25
    v_xor_b32 v23, v23, v22
    v_lshl_add_u32 v25, v23, 1, v24
    v_mul_u32_u24 v25, {QROW}, v25
    v_lshl_add_u32 v25, v20, 4, v25
    v_add_u32 v{XK}, {L_QK}, v25
    s_lshr_b32 s61, s{S_W}, 1
    s_lshl_b32 s61, s61, 10
    s_and_b32 s62, s{S_W}, 1
    s_lshl_b32 s62, s62, 3
    s_add_u32 s61, s61, s62
    s_add_u32 s61, s61, {L_O}
    v_add_u32 v{OW}, s61, v{L16}
    v_lshrrev_b32 v23, 2, v0
    v_lshlrev_b32 v23, 11, v23
    v_and_b32 v24, 3, v0
    v_lshl_add_u32 v{RSR}, v24, 4, v23
    """)
    for j, so in enumerate((S_O1, S_O2, S_O3)):
        o(f"s_xor_b32 s61, s{S_W}, {j+1}\ns_sub_i32 s61, s61, s{S_W}\ns_mul_i32 s{so}, s61, {L_STR}")
    o(f"""
    v_lshrrev_b32 v23, 1, v20
    v_and_b32 v25, 1, v20
    v_and_b32 v26, 2, v0
    v_add_u32 v26, v26, v23
    v_lshlrev_b32 v26, 4, v26
    v_and_b32 v27, 1, v0
    v_lshl_add_u32 v26, v27, 3, v26
    v_lshl_add_u32 v26, v25, 2, v26
    v_cmp_gt_u32 vcc, 4, v21
    v_mov_b32 v27, 0x40000000
    s_nop 0
    v_cndmask_b32 v{AGW}, v27, v26, vcc
    """)
    o(f"""
    s_lshl_b32 s60, s{S_H}, 2
    s_add_u32 s60, s60, s{S_W}
    s_lshl_b32 s61, s60, 11
    s_add_u32 s{S_RSR}, s61, {RS}
    s_lshr_b32 s61, s60, 4
    s_bfe_u32 s62, s60, 0x20002
    s_and_b32 s63, s60, 3
    s_lshl_b32 s{S_AGW}, s61, 10
    s_lshl_b32 s58, s63, 8
    s_add_u32 s{S_AGW}, s{S_AGW}, s58
    s_lshl_b32 s58, s62, 6
    s_add_u32 s{S_AGW}, s{S_AGW}, s58
    s_add_u32 s{S_AGW}, s{S_AGW}, {AG}
    s_lshr_b32 s58, s61, 1
    s_lshl_b32 s58, s58, 8
    s_and_b32 s61, s61, 1
    s_lshl_b32 s61, s61, 3
    s_add_u32 s58, s58, s61
    s_lshl_b32 s63, s63, 6
    s_add_u32 s58, s58, s63
    s_lshl_b32 s62, s62, 11
    s_add_u32 s58, s58, s62
    v_lshlrev_b32 v26, 10, v23
    v_lshl_add_u32 v26, v24, 4, v26
    v_lshl_add_u32 v26, v25, 2, v26
    """)
    mk_srd(o, R_A, S_MEM0, 8192)
    o(f"buffer_load_dword v28, v26, {srd(R_A)}, s58 offen")
    for i in range(4): o(f"v_mov_b32 v{32+i}, -1")
    for i in range(2): o(f"buffer_store_dwordx4 v[32:35], v{L16}, {srd(R_WS)}, s{S_RSR} offen offset:{i*1024} sc1")
    o(f"s_xor_b32 s60, s{S_AGW}, 8192\nbuffer_store_dword v32, v{AGW}, {srd(R_WS)}, s60 offen sc1")
    o(f"s_waitcnt vmcnt(3)\nv_min_u32 v28, -2, v28\nbuffer_store_dword v28, v{AGW}, {srd(R_WS)}, s{S_AGW} offen sc1")
    arrive_dbg(o, D_REC, 30, 31)
    load_weights(o)
    stamp(o, 1, False)
    o(f"""
    v_and_b32 v21, 15, v0
    v_lshrrev_b32 v23, 3, v21
    v_lshlrev_b32 v23, 4, v23
    v_mov_b32 v24, 0x3f80
    v_lshlrev_b32 v24, v23, v24
    v_and_b32 v25, 7, v21
    """)
    for dw, pat in enumerate((0, 1, 4, 5)):
        o(f"v_cmp_eq_u32 vcc, {pat}, v25\ns_nop 1\nv_cndmask_b32 v{SEL+dw}, 0, v24, vcc")
    o(f"""
    s_mov_b32 s{S_S}, 0
    s_mov_b32 s{S_SC}, {fbits(128**-0.5*math.log2(math.e))}
    s_lshl_b32 s60, s{S_W}, 11
    s_add_u32 s{S_AG}, s60, {AG}
    s_lshl_b32 s61, s{S_H}, 6
    s_lshl_b32 s62, s{S_W}, 16
    s_add_u32 s61, s61, s62
    s_add_u32 s{S_RSW}, s61, {RS}
    s_add_u32 s{S_RSW2}, s61, {RS+32768}
    s_mov_b32 s{S_PAR}, 0
    s_lshl_b32 s61, s{S_W}, 7
    s_add_u32 s61, s61, {L_QK+KOFF}
    s_lshl_b32 s62, s{S_W}, 10
    s_add_u32 s62, s62, {L_QK-2048}
    s_cmp_lt_u32 s{S_W}, 2
    s_cselect_b32 s{S_PA}, s61, s62
    s_cselect_b32 s{S_PB}, {QROW}, 64
    s_cselect_b32 s{S_PC}, 64, 512
    s_lshl_b32 s61, s{S_H}, 14
    s_add_u32 s61, s61, s60
    s_add_u32 s{S_KV}, s61, {KV}
    s_mul_i32 s61, s{S_H}, {KVM_SZ}
    s_lshl_b32 s62, s{S_W}, 10
    s_add_u32 s61, s61, s62
    s_add_u32 s{S_KVM}, s61, {KVM-32*KVM_SZ}
    s_lshl_b32 s61, s{S_H}, 4
    s_add_u32 s{S_FKV}, s61, {FL_KV}
    s_add_u32 s83, s61, {FL_KV+63*512}
    """)
    wait_dbg(o, D_ARR, 256, 20, 21, 32)
    wait_dbg(o, D_REC, 256, 20, 21, 64)
    o(f"v_mov_b32 v21, 0\nglobal_load_dword v20, v21, s[{S_DBG}:{S_DBG+1}] sc1")
    flag_load(o); o("s_waitcnt vmcnt(0)"); flag_check(o, 128)
    kv_dma(o)
    o(f"s_add_u32 s{S_KV}, s{S_KV}, {32*16384}\ns_add_u32 s{S_FKV}, s{S_FKV}, 512")
    flag_load(o); o("s_waitcnt vmcnt(0)"); flag_check(o, 128)
    o(f"s_add_u32 s{S_FKV}, s{S_FKV}, 512")
    sh1(o); sh2(o); sh3(o); sh4(o)
    o(f"v_readfirstlane_b32 s60, v20\ns_waitcnt lgkmcnt(0)\ns_cmp_lt_u32 s60, 32\ns_cbranch_scc1 REC_SLOW")
    if dbg: rstamp(o, 1)
    o(f"s_mov_b32 s{S_ONE}, 0x3f803f80\ns_mov_b32 s{S_ONE+1}, 0x3f803f80")
    step_loop(o, "", dbg)
    if dbg:
        rstamp(o, 2)
        for i in range(NP+2): o(f"v_mov_b32 v{T0}, s{40+i}\nbuffer_store_dword v{T0}, v{T1}, {srd(R_WS)}, s62 offen offset:{(8-2+i)*4}")
        o(f"s_lshl_b32 s7, s{S_W}, 8\nv_lshrrev_b32 v{T1}, 2, v{L16}\nv_add_u32 v{T0}, s7, v{T1}\nds_read_b32 v{T0}, v{T0} offset:{L_QK+4608}")
        o(f"s_lshl_b32 s62, s{S_H}, 10\ns_add_u32 s62, s62, s7\ns_add_u32 s62, s62, {TS+262144}\ns_waitcnt lgkmcnt(0)\nbuffer_store_dword v{T0}, v{T1}, {srd(R_WS)}, s62 offen")
    o("s_waitcnt vmcnt(0)\ns_endpgm\nREC_SLOW:")
    o(f"s_mov_b32 s{S_ONE}, 0x3f803f80\ns_mov_b32 s{S_ONE+1}, 0x3f803f80")
    step_loop(o, " sc1", dbg)

def rstamp(o, slot):
    o(f"s_memrealtime s[62:63]\ns_waitcnt lgkmcnt(0)\nv_mov_b32 v{T0}, s62")
    o(f"s_lshl_b32 s62, s{S_ROLE}, 2\ns_add_u32 s62, s62, s{S_W}\ns_lshl_b32 s62, s62, 7\ns_add_u32 s62, s62, {TS+slot*4}")
    o(f"v_mov_b32 v{T1}, 0\nbuffer_store_dword v{T0}, v{T1}, {srd(R_WS)}, s62 offen")
```

```python
from common import *
import math, struct, os
X = os.environ.get('X','').split(',')
fbits = lambda x: hex(struct.unpack("<I", struct.pack("<f", x))[0])
L_K, L_O, L_QK, L_WV0, L_STR = 0, 8192, 10240, 16384, 36864
LW_V, LW_M = 32768, 34816
QROW = 288; KOFF = 8*QROW
L16, IDX, WL, QKW, XQ, XK, OW, RSR, AGW, FLG = 1, 2, 3, 4, 5, 6, 7, 8, 9, 10
T0, T1 = 0, 11
SEL = 12
MA = 16
QA = 48
KA = 56
VA = 72
XQR = 80
WIN = 96
S_H, S_S, S_AG, S_RSW, S_RSR, S_RSR2, S_KVM, S_KV, S_FKV, S_FKM, S_AGW = 64, 65, 66, 67, 68, 69, 70, 71, 74, 75, 76
S_HM = 72
S_SC = 77
S_O1, S_O2, S_O3 = 78, 79, 80
S_M0K, S_M0V = 81, 82
S_RSW2 = S_RSR2
S_PAR, S_PA, S_PB, S_PC, S_FD = 8, 9, 10, 11, 12
X2 = 64
ok = lambda p, jr: ("o", 2*p+jr//2, jr%2)
WINL = [("q",0,0,WIN),("q",0,1,WIN+8),("q",1,0,WIN+16),("q",1,1,WIN+24),("k",0,0,XQR),("k",0,1,XQR+8),
        ("v",6,0,WIN),("v",6,1,WIN+8),("v",7,0,WIN+16),("v",7,1,WIN+24),
        ok(2,1)+(XQR+8,),ok(3,1)+(WIN,),ok(2,2)+(WIN+8,),ok(3,2)+(WIN+16,),ok(2,3)+(WIN+24,),ok(3,3)+(VA,)]
win = {x[:3]: (n, x[3]) for n, x in enumerate(WINL)}
res = {}
def _alloc():
    lst = [(m, i, j) for m in "qkvo" for i in range(8) for j in range(2) if (m, i, j) not in win]
    assert len(lst) == 48
    for n, key in enumerate(lst):
        res[key] = ("a", n*8) if n < 32 else ("v", 128+(n-32)*8)
_alloc()
def opnd(mname, i, j):
    if (mname, i, j) in res:
        k, b = res[(mname, i, j)]; return f"{k}[{b}:{b+7}]"
    b = win[(mname, i, j)][1]; return f"v[{b}:{b+7}]"
def win_rd(key, x):
    n, r = win[key]
    return f"ds_read_b128 {v(r+4*x,4)}, v{WL} offset:{n*2048+x*1024}"
def smf(o, d, a, b): o(f"v_smfmac_f32_16x16x64_bf16 {v(d,4)}, {v(a,4)}, {b}, v{IDX}")
def mf(o, d, a, b, c): o(f"v_mfma_f32_16x16x32_bf16 {v(d,4)}, {v(a,4)}, {v(b,4)}, {c if isinstance(c,str) else v(c,4)}")

def load_weights(o):
    STG, TMP = 16, 80
    o(f"""
    v_lshrrev_b32 v13, 5, v0
    v_bfe_u32 v14, v0, 4, 1
    v_and_b32 v15, 15, v0
    v_lshlrev_b32 v12, 18, v13
    v_lshl_add_u32 v12, v14, 16, v12
    v_lshl_add_u32 v12, v15, 2, v12
    s_lshl_b32 s60, s{S_H}, 8
    s_lshl_b32 s61, s{S_W}, 6
    s_add_u32 s60, s60, s61
    v_add_u32 v12, s60, v12
    v_lshlrev_b32 v11, 13, v13
    v_lshl_add_u32 v11, v14, 12, v11
    v_lshl_add_u32 v11, v15, 4, v11
    s_lshl_b32 s60, s{S_H}, 17
    s_lshl_b32 s61, s{S_W}, 8
    s_add_u32 s60, s60, s61
    v_add_u32 v11, s60, v11
    """)
    for j in range(4): o(f"s_xor_b32 s{84+j}, s{S_W}, {j}\ns_lshl_b32 s{84+j}, s{84+j}, 20")
    groups = [(m, i) for m in "qkv" for i in range(8)] + [("o", x) for x in range(8)]
    def issue(n):
        m, i = groups[n]; b = STG+(n%4)*16
        if m == "o":
            if i == 0: mk_srd(o, R_B, S_WO, 4096*512*2)
            for y in range(2):
                z = 2*i+y
                for bb in range(2):
                    e = 16*((z%4)//2)+2*(z%2)+bb
                    o(f"s_lshr_b32 s60, s{84+z//4}, 5\ns_add_u32 s60, s60, {e*1024}\nbuffer_load_dwordx4 {v(b+y*8+bb*4,4)}, v11, {srd(R_B)}, s60 offen")
            return 4
        if i == 0: mk_srd(o, R_A if m != "k" else R_B, {"q": S_WQ, "k": S_WK, "v": S_WV}[m], 512*4096*2)
        for jj in range(8):
            for bb in range(2):
                d = 4*(i%2)+64*(jj//4)+16*(jj%2)+2*((jj%4)//2)+bb
                o(f"s_add_u32 s60, s{84+i//2}, {d*8192}\nbuffer_load_dword v{b+2*jj+bb}, v12, {srd(R_A if m != 'k' else R_B)}, s60 offen")
        return 16
    cnt = {}
    AH = 3
    for n in range(AH): cnt[n] = issue(n)
    for n, (m, i) in enumerate(groups):
        o(f"s_waitcnt vmcnt({sum(cnt[x] for x in range(n+1, min(n+AH, len(groups))))})")
        b = STG+(n%4)*16
        if m == "o":
            for y in range(2):
                z = 2*i+y
                for tl in range(8):
                    src = f"v{b+y*8+4+tl//2}, v{b+y*8+tl//2}, s{S_PL if tl%2==0 else S_PH}"
                    key = ok(tl//2, z//4); jj = 2*(z%4)+tl%2
                    if key in res:
                        k, r = res[key]; assert k == "v"
                        o(f"v_perm_b32 v{r+jj}, {src}")
                    else: o(f"v_perm_b32 v{TMP+8*(win[key][0]-10)+jj}, {src}")
        else:
            for tau in range(2):
                key = (m, i, tau)
                direct = key in res and res[key][0] == "v"
                for jj in range(8):
                    dst = res[key][1]+jj if direct else TMP+tau*8+jj
                    o(f"v_perm_b32 v{dst}, v{b+2*jj+1}, v{b+2*jj}, s{S_PL if tau==0 else S_PH}")
                if key not in res:
                    for x in range(2):
                        o(f"ds_write_b128 v{WL}, {v(TMP+tau*8+4*x,4)} offset:{win[key][0]*2048+x*1024}")
                elif not direct:
                    for jj in range(8): o(f"v_accvgpr_write_b32 a{res[key][1]+jj}, v{TMP+tau*8+jj}")
            if (m, i, 0) not in res: o("s_waitcnt lgkmcnt(0)")
        if n+AH < len(groups): cnt[n+AH] = issue(n+AH)
    for x in range(12): o(f"ds_write_b128 v{WL}, {v(TMP+4*x,4)} offset:{10*2048+x*1024}")
    o("s_waitcnt lgkmcnt(0)")

def kv_dma(o):
    o(f"s_mov_b32 m0, s{S_M0K}\ns_add_u32 s60, s{S_KV}, 8192")
    for i in range(2): o(f"buffer_load_dwordx4 v{L16}, {srd(R_WS)}, s{S_KV} offen offset:{i*1024} lds")
    o(f"s_mov_b32 m0, s{S_M0V}\ns_nop 0")
    for i in range(2): o(f"buffer_load_dwordx4 v{L16}, {srd(R_WS)}, s60 offen offset:{i*1024} lds")
def dma(o, so, i):
    if "nodma" not in X: o(f"buffer_load_dwordx4 v{L16}, {srd(R_WS)}, s{so} offen offset:{i*1024} lds")

def flag_load(o):
    o(f"v_bfe_u32 v{T1}, v{L16}, 2, 4\nbuffer_load_dword v{FLG}, v{T1}, {srd(R_WS)}, s{S_FKV} offen sc1")
def flag_check(o, code):
    L, D = o.lab("FW"), o.lab("FWD")
    o(f"v_cmp_ne_u32 vcc, 1, v{FLG}\ns_mov_b32 s61, 0\ns_nop 3\ns_cmp_eq_u32 vcc_hi, 0\ns_cbranch_scc1 {D}\n{L}:")
    flag_load(o)
    o(f"s_waitcnt vmcnt(0)\nv_cmp_ne_u32 vcc, 1, v{FLG}\ns_cbranch_vccz {D}\ns_add_u32 s61, s61, 1\ns_cmp_lt_u32 s61, {SPIN_MAX}\ns_cbranch_scc1 {L}")
    spin_fail(o, code)
    o(f"{D}:")

def pld(o, r, so):
    for i in range(2): o(f"buffer_load_dwordx4 {v(r+4*i,4)}, v{L16}, {srd(R_WS)}, s{so} offen offset:{i*1024} sc1")
def bound(o, D): o(f"s_add_u32 s61, s61, 1\ns_cmp_lt_u32 s61, {SPIN_MAX}\ns_cbranch_scc0 {D}")
def poll_rs(o, ra, rb, so, code, spec):
    L, OK, D = o.lab("PL"), o.lab("PK"), o.lab("PLD")
    o(f"s_mov_b32 s61, 0\n{L}:")
    for n, r in enumerate((ra, rb)):
        o("s_waitcnt vmcnt(3)"); o(spec(r, 0))
        o(f"v_xor_b32 v{T0}, s{S_PAR}, v{r}\ns_waitcnt vmcnt(2)"); o(spec(r, 1))
        o(f"v_xor_b32 v{T1}, s{S_PAR}, v{r+4}\nv_or_b32 v{T0}, v{T0}, v{T1}\nv_and_b32 v{T0}, 1, v{T0}\nv_cmp_ne_u32 vcc, 0, v{T0}\ns_cbranch_vccz {OK}")
        pld(o, r, so); bound(o, D)
    o(f"s_branch {L}\n{OK}:")
    return D, code

def z64(r): return f"v_mov_b64 {v(r,2)}, 0"
S_ONE = 62
PUB = X2+4
PF = X2+3
def pub_read(o):
    o(f"v_bfe_u32 v{T0}, v{L16}, 6, 3\nv_and_b32 v{T1}, 48, v{L16}\nv_mad_u32_u24 v{T0}, v{T0}, s{S_PB}, v{T1}\nv_lshrrev_b32 v{T1}, 9, v{L16}")
    o(f"v_mad_u32_u24 v{T0}, v{T1}, s{S_PC}, v{T0}\nv_add_u32 v{T0}, s{S_PA}, v{T0}\nds_read_b128 {v(PUB,4)}, v{T0}")
def pad(o, name):
    n = int(os.environ.get(name, "0"))
    while n > 0: o(f"s_nop {min(n,16)-1}"); n -= 16
def wins(o, a, b):
    for key in WINL[a:b]:
        for x in range(2): o(win_rd(key[:3], x))
def sh1(o):
    wins(o, 0, 3); pub_read(o)
def sh2(o):
    wins(o, 3, 6)
    for r in range(QA, QA+16, 2): o(z64(r))
def sh3(o):
    for r in range(VA, VA+8, 2): o(z64(r))
def sh4(o):
    o(f"s_sub_u32 s{S_FD}, s{S_FKV}, s{S_KV}")
    o(f"v_bfe_u32 v{T0}, v{L16}, 8, 1\nv_and_b32 v{PF}, 0xf0, v{L16}\nv_lshlrev_b32 v{T0}, 13, v{T0}\nv_lshl_add_u32 v{PF}, v{PF}, 3, v{T0}")
    o(f"s_mov_b32 exec_lo, 0\nv_bfe_u32 v{PF}, v{L16}, 2, 4\nv_add_u32 v{PF}, s{S_FD}, v{PF}\ns_mov_b32 exec_lo, -1")

NP = 9
PN = ["0"]+[x for x in os.environ["PT"].split(",") if x] if "PT" in os.environ else None
PT = list(range(len(PN))) if PN else None
def step_loop(o, sc, dbg):
    TOP, FIN = o.lab("RT"), o.lab("RF")
    prof = dbg == 2 and sc == ""
    def tm(i):
        if PN is not None:
            if str(i) not in PN: return
            i = PN.index(str(i))
        elif isinstance(i, str): return
        if prof: o(f"s_memtime s[{84+2*i}:{85+2*i}]")
    if prof:
        for i in range(NP+2): o(f"s_mov_b32 s{40+i}, 0")
    q = []
    def ds(txt, tag=None): o(txt); q.append(tag)
    def wl(tag):
        n = len(q)-1-max(i for i, t in enumerate(q) if t == tag)
        assert n <= 15
        o(f"s_waitcnt lgkmcnt({n})")
    HM = f"s[{S_HM}:{S_HM+1}]"
    acc = {"q": QA, "k": KA, "v": VA}
    def Z(m, i, tau): smf(o, acc[m]+4*tau, MA+4*i, opnd(m, i, tau))
    fails = []
    PUBPOS = os.environ.get("PUBPOS", "a")
    pub = f"buffer_store_dwordx4 {v(PUB,4)}, v{L16}, {srd(R_WS)}, s{S_KVM} offen sc1"
    LA, EA, LB, EB, DA = o.lab("PA"), o.lab("PAE"), o.lab("PB"), o.lab("PBE"), o.lab("PAD")
    fails.append((DA, 4))
    def mx(r): return (f"v_max3_u32 v{T0}, v{r}, v{r+1}, v{r+2}", f"v_max_u32 v{T0}, v{T0}, v{r+3}", f"v_cmp_eq_u32 vcc, -1, v{T0}")
    pld(o, MA, S_AG); pld(o, MA, S_AG)
    o(f"{TOP}:")
    tm(0)
    o(f"s_mov_b32 s61, 0\ns_branch {EA}\n{LA}:")
    pld(o, MA, S_AG); bound(o, DA)
    o(f"{EA}:\ns_waitcnt vmcnt(3)")
    o("\n".join(mx(MA))); o(f"ds_write_b128 v{WL}, {v(MA,4)} offset:{LW_M}\ns_cbranch_vccnz {LA}")
    tm(1)
    wb = f"ds_write_b128 v{WL}, {v(MA+4,4)} offset:{LW_M+1024}"
    c = mx(MA+4)
    Z("q",0,0); o("s_waitcnt vmcnt(2)"); o(c[0]); o(c[1])
    Z("q",0,1); o(wb); o(c[2]); Z("k",0,0); Z("k",0,1)
    o(f"s_cbranch_vccnz {LB}\n{EB}:")
    if prof: o("s_add_u32 s49, s49, s61")
    tm("e"); o("s_waitcnt lgkmcnt(0)\ns_barrier")
    tm(2)
    mrd = lambda i: ds(f"ds_read_b128 {v(MA+4*i,4)}, v{X2+(i-2)//2} offset:{LW_M+(i%2)*1024}", f"m{i}")
    krd = lambda x: ds(f"ds_read_b128 {v(WIN+4*x,4)}, v{L16} offset:{L_K+((x%2)*4+x//2)*1024}", "K")
    mrd(2); mrd(3)
    if "nopf" not in X: o(f"buffer_load_dword v{FLG}, v{PF}, {srd(R_WS)}, s{S_KV} offen")
    Z("q",1,0); mrd(4); mrd(5); Z("q",1,1); mrd(6); mrd(7); Z("k",1,0); krd(0); krd(1); Z("k",1,1); krd(2)
    for i in range(2, 8):
        tm(f"a{i}"); wl(f"m{i}"); Z("q",i,0)
        if i < 7: krd(i+1)
        Z("q",i,1)
        if i == 4 and "nopub" not in X and PUBPOS == "a": o(pub)
    add = lambda r: o(f"v_add_f32 v{r}, v{r}, v{r+2}")
    def cvt(d, x, y): o(f"v_cvt_pk_bf16_f32 v{d}, v{x}, v{y}")
    tm("b0"); Z("k",2,0); Z("k",2,1)
    add(QA); add(QA+4); cvt(T0, QA, QA+4)
    Z("k",3,0); ds(f"ds_write_b32 v{QKW}, v{T0}", "qw")
    add(QA+1); add(QA+5); cvt(T1, QA+1, QA+5)
    Z("k",3,1); ds(f"ds_write_b32 v{QKW}, v{T1} offset:{QROW}", "qw")
    tm("b1"); Z("k",4,0); Z("k",4,1); Z("k",5,0); Z("k",5,1)
    tm("b2"); wl("qw"); o("s_barrier")
    tm(3)
    qrd = lambda c: ds(f"ds_read_b128 {v(XQR+4*c,4)}, v{XQ} offset:{c*64}", f"q{c}")
    qrd(0); qrd(1); Z("k",6,0); qrd(2); qrd(3); Z("k",6,1); Z("k",7,0); Z("k",7,1)
    def S(c, tl): mf(o, QA+4*tl, WIN+8*c+4*tl, XQR+4*c, "0" if c == 0 else QA+4*tl)
    vw = lambda n, x: ds(win_rd(WINL[6+n][:3], x), f"vw{n}")
    wl("q0"); S(0,0); S(0,1)
    wl("q1"); add(KA); add(KA+4)
    S(1,0); cvt(T0, KA, KA+4); add(KA+1)
    S(1,1); ds(f"ds_write_b32 v{QKW}, v{T0} offset:{KOFF}", "kw"); add(KA+5); cvt(T1, KA+1, KA+5)
    wl("q2"); S(2,0); ds(f"ds_write_b32 v{QKW}, v{T1} offset:{KOFF+QROW}", "kw"); vw(0,0); vw(0,1)
    S(2,1); wl("q3")
    S(3,0); vw(1,0); vw(1,1)
    S(3,1); o(f"s_waitcnt vmcnt({1 + (PUBPOS == 'a')})")
    Z("v",0,0)
    if PUBPOS == "c": o(pub)
    wl("kw"); o("s_barrier")
    tm(4)
    XKR = [KA, KA+4, MA, MA+4]
    xrd = lambda c: ds(f"ds_read_b128 {v(XKR[c],4)}, v{XK} offset:{KOFF+c*64}", f"x{c}")
    xrd(0); xrd(1); Z("v",0,1); xrd(2)
    o(f"v_max3_f32 v{T0}, v{QA}, v{QA+1}, v{QA+2}")
    Z("v",1,0); vw(2,0); vw(2,1)
    o(f"v_max3_f32 v{T1}, v{QA+4}, v{QA+5}, v{QA+6}")
    Z("v",1,1); xrd(3)
    o(f"v_max3_f32 v{T0}, v{T0}, v{QA+3}, v{QA+7}")
    Z("v",2,0); vw(3,0); vw(3,1)
    o(f"v_max_f32 v{T0}, v{T0}, v{T1}")
    Z("v",2,1)
    o(f"v_mov_b32 v{T1}, v{T0}")
    SM = MA+8
    cn = lambda i: o(f"v_cndmask_b32 v{QA+i}, v{QA+i}, v{QA+4+i}, {HM}")
    wl("x0"); mf(o, SM, XKR[0], XQR, "0"); wl("x1")
    o(f"v_permlane16_swap_b32 v{T0}, v{T1}")
    mf(o, SM, XKR[1], XQR+4, SM); wl("x2"); cn(0); o(f"v_max_f32 v{T0}, v{T0}, v{T1}")
    mf(o, SM, XKR[2], XQR+8, SM); wl("x3"); cn(1); cn(2)
    mf(o, SM, XKR[3], XQR+12, SM); cn(3)
    VX = KA
    PB, PM, VM, OP = XQR, XQR+4, VA+2, QA+4
    O0, O1, ZZ, WA = MA, MA+4, MA+12, MA+16
    Z("v",3,0)
    for tau in range(2): ds(f"ds_read_b128 {v(VX+4*tau,4)}, v{WL} offset:{LW_V+tau*1024}", "V")
    o(f"v_mov_b32 v{PM+1}, 0")
    Z("v",3,1)
    ow = lambda n, x: ds(win_rd(WINL[10+n][:3], x), f"ow{n}")
    ow(0,0); ow(0,1)
    o(f"v_max3_f32 v{T0}, v{T0}, v{SM}, v{SM+1}\nv_max3_f32 v{T0}, v{T0}, v{SM+2}, v{SM+3}\nv_mov_b32 v{T1}, v{T0}")
    Z("v",4,0); wl("vw3")
    o(f"v_permlane32_swap_b32 v{T0}, v{T1}")
    Z("v",4,1)
    o(f"v_max_f32 v{T0}, v{T0}, v{T1}")
    fm = lambda r: o(f"v_fma_f32 v{r}, v{r}, s{S_SC}, -v{T0}")
    ex = lambda r: o(f"v_exp_f32 v{r}, v{r}")
    Z("v",6,0); o(f"v_mul_f32 v{T0}, s{S_SC}, v{T0}")
    Z("v",6,1); ow(1,0); ow(1,1); fm(QA)
    Z("v",7,0); ow(2,0); ow(2,1); fm(QA+1)
    Z("v",7,1); ow(3,0); ow(3,1); fm(QA+2)
    Z("v",5,0); ow(4,0); ow(4,1); fm(QA+3)
    Z("v",5,1); o(f"s_mov_b32 m0, s{S_M0K}")
    dp = lambda x, src, qp: o(f"v_mov_b32_dpp v{PB+x}, v{src} quad_perm:{qp} row_mask:0xf bank_mask:0xf")
    ex(QA); ex(QA+1); fm(SM); fm(SM+1); ex(QA+2); cvt(T0, QA, QA+1); ex(QA+3); ex(SM); cvt(T1, QA+2, QA+3); ex(SM+1)
    dp(0, T0, "[0,1,0,1]"); dp(2, T0, "[2,3,2,3]"); dp(1, T1, "[0,1,0,1]"); dp(3, T1, "[2,3,2,3]")
    cvt(PM, SM, SM+1); wl("V"); o(f"v_mov_b32 v{PM+2}, 0")
    m16 = lambda d, a, b: o(f"v_mfma_f32_16x16x16_bf16 {v(d,4)}, {v(a,2)}, {v(b,2)}, {v(d,4)}")
    mf(o, ZZ, SEL, PB, "0"); add(VA); add(VA+1)
    mf(o, O0, VX, PB, "0"); add(VA+4); add(VA+5)
    mf(o, O1, VX+4, PB, "0"); cvt(VM, VA, VA+1); cvt(VM+1, VA+4, VA+5)
    m16(ZZ, SEL, PM); cvt(PM+3, SM, SM+1); o(f"s_cmp_eq_u32 s{S_S}, 63")
    m16(O0, VM, PM); ds(f"ds_write_b64 v{OW}, {v(VM,2)} offset:{L_QK-L_O}")
    o(f"s_cbranch_scc1 {FIN}")
    m16(O1, VM, PM+2)
    for r in range(WA, WA+8, 2): o(z64(r))
    o(f"v_rcp_f32 v{T0}, v{ZZ+2}")
    for r in range(WA+8, WA+16, 2): o(z64(r))
    for i in range(8): o(f"v_mul_f32 v{O0+i}, v{O0+i}, v{T0}")
    for i in range(4): cvt(OP+i, O0+i, O1+i)
    ds(f"ds_write_b128 v{WL}, {v(OP,4)} offset:{LW_M}")
    tm(5)
    OA = [OP, MA, MA+4, MA+8]
    W = lambda p, jr: smf(o, WA+4*p, OA[jr], opnd(*ok(p, jr)))
    o(f"s_add_u32 s{S_S}, s{S_S}, 1")
    W(0,0); o(f"s_xor_b32 s{S_AG}, s{S_AG}, 8192"); W(1,0); W(2,0); W(3,0)
    o("s_waitcnt lgkmcnt(0)\ns_barrier")
    for jr in range(1, 4): ds(f"ds_read_b128 {v(OA[jr],4)}, v{X2+jr-1} offset:{LW_M}", f"o{jr}")
    ow(5,0); ow(5,1)
    if "nopub" not in X and PUBPOS == "b": o(pub)
    o(f"s_add_u32 s{S_KVM}, s{S_KVM}, {32*KVM_SZ}")
    wl("o1")
    tm(6)
    PK = KA
    pk = lambda t: cvt(PK+t, WA+2*t, WA+2*t+1)
    tag = lambda r: o(f"v_and_or_b32 v{r}, v{r}, -2, s{S_PAR}")
    W(0,1); W(1,1); wl("o2"); W(0,2); W(1,2); wl("o3"); W(0,3); W(1,3)
    W(2,1); W(3,1); pk(0); pk(1); W(2,2); pk(2); pk(3); W(3,2); wl("ow5"); tag(PK); W(2,3)
    o(f"buffer_store_dwordx4 {v(PK,4)}, v{RSR}, {srd(R_WS)}, s{S_RSW} offen{sc}")
    W(3,3); o("s_nop 3")
    pk(4); pk(5); tag(PK+4); o("s_nop 0"); pk(6); pk(7)
    o(f"buffer_store_dwordx4 {v(PK+4,4)}, v{RSR}, {srd(R_WS)}, s{S_RSW2} offen{sc}")
    tm(7)
    dma(o, S_KV, 0); dma(o, S_KV, 1)
    o(f"s_add_u32 s59, s{S_KV}, 8192\ns_mov_b32 m0, s{S_M0V}")
    o(f"s_add_u32 s{S_KV}, s{S_KV}, {32*16384}\ns_xor_b32 s60, s{S_AGW}, 8192\nv_mov_b32 v{MA}, -1")
    RB, RD, RC = MA+8, MA+16, MA+24
    sh1(o); pad(o, "P1"); pld(o, RB, S_RSR)
    sh2(o); pad(o, "P2"); pld(o, RC, S_RSR)
    mtxt = lambda r, i: f"v_mfma_f32_16x16x32_bf16 {v(RD,4)}, {v(SEL,4)}, {v(r+4*i,4)}, {v(RD,4) if i else 0}"
    fails.append(poll_rs(o, RB, RC, S_RSR, 16, mtxt))
    if prof: o("s_add_u32 s50, s50, s61")
    tm(8)
    o("s_nop 3")
    for sh in (4, 8):
        for i in range(2): o(f"v_add_f32_dpp v{RD+i}, v{RD+i}, v{RD+i} row_ror:{sh} row_mask:0xf bank_mask:0xf")
        if sh == 4: o("s_nop 0")
    o(f"v_cvt_pk_bf16_f32 v{RD}, v{RD}, v{RD+1}")
    o(f"buffer_store_dword v{RD}, v{AGW}, {srd(R_WS)}, s60 offen{sc}"); tm("g")
    o(f"buffer_store_dword v{MA}, v{AGW}, {srd(R_WS)}, s{S_AGW} offen{sc}\ns_mov_b32 s{S_AGW}, s60\ns_xor_b32 s{S_PAR}, s{S_PAR}, 1")
    dma(o, 59, 0); dma(o, 59, 1)
    flag_check(o, 8)
    o(f"s_add_u32 s{S_FKV}, s{S_FKV}, 512\ns_min_u32 s{S_FKV}, s{S_FKV}, s83")
    sh3(o); pad(o, "P3"); pld(o, MA, S_AG)
    sh4(o); pad(o, "P4"); pld(o, MA, S_AG)
    o("s_waitcnt lgkmcnt(0)")
    if prof:
        o("s_memtime s[6:7]\ns_waitcnt lgkmcnt(0)")
        act = list(range(NP)) if PT is None else sorted(PT)
        for n, i in enumerate(act):
            o(f"s_sub_u32 s5, s{84+2*act[n+1] if n+1 < len(act) else 6}, s{84+2*i}\ns_add_u32 s{40+i}, s{40+i}, s5")
        tr = int(os.environ.get("TR", "-1"))
        o(f"s_mov_b32 s5, s{84+2*int(os.environ.get('TRA','0'))}" if tr < 0 else f"s_sub_u32 s5, s{84+2*tr+2 if tr < NP-1 else 6}, s{84+2*tr}")
        o(f"s_lshl_b32 s7, s{S_W}, 6\ns_add_u32 s7, s7, s{S_S}\ns_lshl_b32 s7, s7, 2\ns_add_u32 s7, s7, {L_QK+4608}\nv_mov_b32 v{T0}, s7\nv_mov_b32 v{T1}, s5\nds_write_b32 v{T0}, v{T1}")
    o(f"s_branch {TOP}\n{LB}:")
    o(f"buffer_load_dwordx4 {v(MA+4,4)}, v{L16}, {srd(R_WS)}, s{S_AG} offen offset:1024 sc1"); bound(o, DA)
    o("s_waitcnt vmcnt(1)"); o("\n".join(mx(MA+4))); o(f"{wb}\ns_cbranch_vccnz {LB}\ns_branch {EB}")
    for lab, code in fails:
        o(f"{lab}:"); spin_fail(o, code)
    o(f"{FIN}:")
    if PUBPOS == "b": o(pub)
    o(f"s_waitcnt lgkmcnt(0)\ns_barrier\ns_add_u32 s{S_KVM}, s{S_KVM}, {32*KVM_SZ}")
    pub_read(o)
    o(f"s_waitcnt lgkmcnt(0)\n{pub}\ns_waitcnt vmcnt(0)")

def recurrence(o, dbg):
    o(f"s_mov_b32 s{S_H}, s{S_ROLE}\ns_barrier")
    o(f"""
    v_lshlrev_b32 v{L16}, 4, v0
    v_lshrrev_b32 v20, 4, v0
    v_and_b32 v21, 15, v0
    v_bfe_u32 v22, v0, 1, 1
    v_cmp_eq_u32 s[{S_HM}:{S_HM+1}], 1, v22
    v_mov_b32 v23, 0x4444
    v_mov_b32 v24, 0xeeee
    s_mul_i32 s60, s{S_W}, {L_STR}
    v_cndmask_b32 v{IDX}, v23, v24, s[{S_HM}:{S_HM+1}]
    s_add_u32 s60, s60, {L_WV0}
    v_add_u32 v{WL}, s60, v{L16}
    s_add_u32 s{S_M0V}, s60, {LW_V}
    s_lshl_b32 s{S_M0K}, s{S_W}, 11
    v_mul_u32_u24 v23, {2*QROW}, v20
    v_lshl_add_u32 v23, v21, 2, v23
    s_lshl_b32 s61, s{S_W}, 6
    s_add_u32 s61, s61, {L_QK}
    v_add_u32 v{QKW}, s61, v23
    v_lshrrev_b32 v23, 2, v21
    v_and_b32 v24, 1, v0
    v_lshl_add_u32 v25, v23, 1, v24
    v_mul_u32_u24 v25, {QROW}, v25
    v_lshl_add_u32 v25, v20, 4, v25
    v_add_u32 v{XQ}, {L_QK}, v25
    v_xor_b32 v23, v23, v22
    v_lshl_add_u32 v25, v23, 1, v24
    v_mul_u32_u24 v25, {QROW}, v25
    v_lshl_add_u32 v25, v20, 4, v25
    v_add_u32 v{XK}, {L_QK}, v25
    s_lshr_b32 s61, s{S_W}, 1
    s_lshl_b32 s61, s61, 10
    s_and_b32 s62, s{S_W}, 1
    s_lshl_b32 s62, s62, 3
    s_add_u32 s61, s61, s62
    s_add_u32 s61, s61, {L_O}
    v_add_u32 v{OW}, s61, v{L16}
    v_lshrrev_b32 v23, 2, v0
    v_lshlrev_b32 v23, 11, v23
    v_and_b32 v24, 3, v0
    v_lshl_add_u32 v{RSR}, v24, 4, v23
    """)
    for j, so in enumerate((S_O1, S_O2, S_O3)):
        o(f"s_xor_b32 s61, s{S_W}, {j+1}\ns_sub_i32 s61, s61, s{S_W}\ns_mul_i32 s{so}, s61, {L_STR}")
    o(f"""
    v_lshrrev_b32 v23, 1, v20
    v_and_b32 v25, 1, v20
    v_and_b32 v26, 2, v0
    v_add_u32 v26, v26, v23
    v_lshlrev_b32 v26, 4, v26
    v_and_b32 v27, 1, v0
    v_lshl_add_u32 v26, v27, 3, v26
    v_lshl_add_u32 v26, v25, 2, v26
    v_cmp_gt_u32 vcc, 4, v21
    v_mov_b32 v27, 0x40000000
    s_nop 0
    v_cndmask_b32 v{AGW}, v27, v26, vcc
    """)
    o(f"""
    s_lshl_b32 s60, s{S_H}, 2
    s_add_u32 s60, s60, s{S_W}
    s_lshl_b32 s61, s60, 11
    s_add_u32 s{S_RSR}, s61, {RS}
    s_lshr_b32 s61, s60, 4
    s_bfe_u32 s62, s60, 0x20002
    s_and_b32 s63, s60, 3
    s_lshl_b32 s{S_AGW}, s61, 10
    s_lshl_b32 s58, s63, 8
    s_add_u32 s{S_AGW}, s{S_AGW}, s58
    s_lshl_b32 s58, s62, 6
    s_add_u32 s{S_AGW}, s{S_AGW}, s58
    s_add_u32 s{S_AGW}, s{S_AGW}, {AG}
    s_lshr_b32 s58, s61, 1
    s_lshl_b32 s58, s58, 8
    s_and_b32 s61, s61, 1
    s_lshl_b32 s61, s61, 3
    s_add_u32 s58, s58, s61
    s_lshl_b32 s63, s63, 6
    s_add_u32 s58, s58, s63
    s_lshl_b32 s62, s62, 11
    s_add_u32 s58, s58, s62
    v_lshlrev_b32 v26, 10, v23
    v_lshl_add_u32 v26, v24, 4, v26
    v_lshl_add_u32 v26, v25, 2, v26
    """)
    mk_srd(o, R_A, S_MEM0, 8192)
    o(f"buffer_load_dword v28, v26, {srd(R_A)}, s58 offen")
    for i in range(4): o(f"v_mov_b32 v{32+i}, -1")
    for i in range(2): o(f"buffer_store_dwordx4 v[32:35], v{L16}, {srd(R_WS)}, s{S_RSR} offen offset:{i*1024} sc1")
    o(f"s_xor_b32 s60, s{S_AGW}, 8192\nbuffer_store_dword v32, v{AGW}, {srd(R_WS)}, s60 offen sc1")
    o(f"s_waitcnt vmcnt(3)\nv_min_u32 v28, -2, v28\nbuffer_store_dword v28, v{AGW}, {srd(R_WS)}, s{S_AGW} offen sc1")
    arrive_dbg(o, D_REC, 30, 31)
    load_weights(o)
    stamp(o, 1, False)
    o(f"""
    v_and_b32 v21, 15, v0
    v_lshrrev_b32 v23, 3, v21
    v_lshlrev_b32 v23, 4, v23
    v_mov_b32 v24, 0x3f80
    v_lshlrev_b32 v24, v23, v24
    v_and_b32 v25, 7, v21
    """)
    for dw, pat in enumerate((0, 1, 4, 5)):
        o(f"v_cmp_eq_u32 vcc, {pat}, v25\ns_nop 1\nv_cndmask_b32 v{SEL+dw}, 0, v24, vcc")
    o("v_and_b32 v25, 3, v21\nv_cmp_eq_u32 vcc, 2, v25\nv_mov_b32 v24, 0x3f803f80\ns_nop 0")
    for dw in range(4): o(f"v_cndmask_b32 v{SEL+dw}, v{SEL+dw}, v24, vcc")
    for j, so in enumerate((S_O1, S_O2, S_O3)): o(f"v_add_u32 v{X2+j}, s{so}, v{WL}")
    o(f"""
    s_mov_b32 s{S_S}, 0
    s_mov_b32 s{S_SC}, {fbits(128**-0.5*math.log2(math.e))}
    s_lshl_b32 s60, s{S_W}, 11
    s_add_u32 s{S_AG}, s60, {AG}
    s_lshl_b32 s61, s{S_H}, 6
    s_lshl_b32 s62, s{S_W}, 16
    s_add_u32 s61, s61, s62
    s_add_u32 s{S_RSW}, s61, {RS}
    s_add_u32 s{S_RSW2}, s61, {RS+32768}
    s_mov_b32 s{S_PAR}, 0
    s_lshl_b32 s61, s{S_W}, 7
    s_add_u32 s61, s61, {L_QK+KOFF}
    s_lshl_b32 s62, s{S_W}, 10
    s_add_u32 s62, s62, {L_QK-2048}
    s_cmp_lt_u32 s{S_W}, 2
    s_cselect_b32 s{S_PA}, s61, s62
    s_cselect_b32 s{S_PB}, {QROW}, 64
    s_cselect_b32 s{S_PC}, 64, 512
    s_lshl_b32 s61, s{S_H}, 14
    s_add_u32 s61, s61, s60
    s_add_u32 s{S_KV}, s61, {KV}
    s_mul_i32 s61, s{S_H}, {KVM_SZ}
    s_lshl_b32 s62, s{S_W}, 10
    s_add_u32 s61, s61, s62
    s_add_u32 s{S_KVM}, s61, {KVM-32*KVM_SZ}
    s_lshl_b32 s61, s{S_H}, 4
    s_add_u32 s{S_FKV}, s61, {FL_KV}
    s_add_u32 s83, s61, {FL_KV+63*512}
    """)
    wait_dbg(o, D_ARR, 256, 20, 21, 32)
    wait_dbg(o, D_REC, 256, 20, 21, 64)
    o(f"v_mov_b32 v21, 0\nglobal_load_dword v20, v21, s[{S_DBG}:{S_DBG+1}] sc1")
    flag_load(o); o("s_waitcnt vmcnt(0)"); flag_check(o, 128)
    kv_dma(o)
    o(f"s_add_u32 s{S_KV}, s{S_KV}, {32*16384}\ns_add_u32 s{S_FKV}, s{S_FKV}, 512")
    flag_load(o); o("s_waitcnt vmcnt(0)"); flag_check(o, 128)
    o(f"s_add_u32 s{S_FKV}, s{S_FKV}, 512")
    sh1(o); sh2(o); sh3(o); sh4(o)
    o(f"v_readfirstlane_b32 s60, v20\ns_waitcnt lgkmcnt(0)\ns_cmp_lt_u32 s60, 32\ns_cbranch_scc1 REC_SLOW")
    if dbg: rstamp(o, 1)
    step_loop(o, "", dbg)
    if dbg:
        rstamp(o, 2)
        for i in range(NP+2): o(f"v_mov_b32 v{T0}, s{40+i}\nbuffer_store_dword v{T0}, v{T1}, {srd(R_WS)}, s62 offen offset:{(8-2+i)*4}")
        o(f"s_lshl_b32 s7, s{S_W}, 8\nv_lshrrev_b32 v{T1}, 2, v{L16}\nv_add_u32 v{T0}, s7, v{T1}\nds_read_b32 v{T0}, v{T0} offset:{L_QK+4608}")
        o(f"s_lshl_b32 s62, s{S_H}, 10\ns_add_u32 s62, s62, s7\ns_add_u32 s62, s62, {TS+262144}\ns_waitcnt lgkmcnt(0)\nbuffer_store_dword v{T0}, v{T1}, {srd(R_WS)}, s62 offen")
    o("s_waitcnt vmcnt(0)\ns_endpgm\nREC_SLOW:")
    step_loop(o, " sc1", dbg)

def rstamp(o, slot):
    o(f"s_memrealtime s[62:63]\ns_waitcnt lgkmcnt(0)\nv_mov_b32 v{T0}, s62")
    o(f"s_lshl_b32 s62, s{S_ROLE}, 2\ns_add_u32 s62, s62, s{S_W}\ns_lshl_b32 s62, s62, 7\ns_add_u32 s62, s62, {TS+slot*4}")
    o(f"v_mov_b32 v{T1}, 0\nbuffer_store_dword v{T0}, v{T1}, {srd(R_WS)}, s62 offen")
```
